```python
import torch

def _softmax(x, axis=-1):
    return torch.softmax(x, dim=axis)
def _gelu(x):
    return torch.nn.functional.gelu(x, approximate="tanh")
def _silu(x):
    return torch.nn.functional.silu(x)
def _sigmoid(x):
    return torch.sigmoid(x)
def _layernorm(x, axis=-1, eps=1e-5):
    m = x.mean(dim=axis, keepdim=True)
    v = x.var(dim=axis, keepdim=True, unbiased=False)
    return (x - m) / torch.sqrt(v + eps)
def _scatter_add(tgt, idx, src, axis=0):
    return tgt.clone().index_add_(axis, idx, src)
def _segment_sum(src, seg, n):
    out = torch.zeros((n,) + src.shape[1:], dtype=src.dtype)
    return out.index_add_(0, seg, src)
def _pad(x, pw):
    flat = tuple(v for pair in reversed(pw) for v in pair)
    return torch.nn.functional.pad(x, flat)

kernel_name = 'sequential_preLN__sliding_block_cached__glu_gated_glu__decode'

def setup_inputs():

    _w = (lambda a: (lambda t: t.to(torch.bfloat16) if t.is_floating_point() else t)(torch.as_tensor(a)))
    def _A_setup():
        B, Sq, D = 8, 1, 640
        Hq, Hkv, Sk, Dh = 32, 32, 4096, 128
        assert Hq % Hkv == 0, (Hq, Hkv)
        return {
            "x": _w((lambda *s: torch.randn(*s, dtype=torch.bfloat16) * 0.05)(B, Sq, D)),
            "k_cache": _w((lambda *s: torch.randn(*s, dtype=torch.bfloat16) * 3.2)(B, Hkv, Sk, Dh)),
            "v_cache": _w((lambda *s: torch.randn(*s, dtype=torch.bfloat16) * 0.4)(B, Hkv, Sk, Dh)),
            "wq": _w((lambda *s: torch.randn(*s, dtype=torch.bfloat16) * 3.2)(D, Hq * Dh) * (D ** -0.5)),
            "wo": _w((lambda *s: torch.randn(*s, dtype=torch.bfloat16) * 0.4)(Hq * Dh, D) * ((Hq * Dh) ** -0.5)),
        }
    _A_in = _A_setup()

    def _B_setup():
        B, S, D, F = 8, 1, 640, 1728
        return {
            "x": _w((lambda *s: torch.randn(*s, dtype=torch.bfloat16) * 0.05)(B, S, D)),
            "w_gate": _w((lambda *s: torch.randn(*s, dtype=torch.bfloat16) * 0.1)(D, F)),
            "w_up": _w((lambda *s: torch.randn(*s, dtype=torch.bfloat16) * 0.05)(D, F)),
            "w_down": _w((lambda *s: torch.randn(*s, dtype=torch.bfloat16) * 0.05)(F, D)),
        }
    _B_in = _B_setup()

    return {
        "A_x": _A_in["x"],
        "A_k_cache": _A_in["k_cache"],
        "A_v_cache": _A_in["v_cache"],
        "A_wq": _A_in["wq"],
        "A_wo": _A_in["wo"],
        "B_x": _B_in["x"],
        "B_w_gate": _B_in["w_gate"],
        "B_w_up": _B_in["w_up"],
        "B_w_down": _B_in["w_down"],
    }

def reference(A_x, A_k_cache, A_v_cache, A_wq, A_wo, B_x, B_w_gate, B_w_up, B_w_down):
    def _A_ref(x, k_cache, v_cache, wq, wo):
        B, Sq, D = x.shape
        Hq, Dh = 32, 128
        Hkv, Sk = k_cache.shape[1], k_cache.shape[2]
        W = min(4096, max(256, Sk // 4))
        rep = Hq // Hkv
        q = (lambda x, *d: x.permute(*d))((x @ wq).reshape(B, Sq, Hq, Dh), 0, 2, 1, 3)
        k = (lambda x, n, axis: torch.repeat_interleave(x, n, dim=axis))(k_cache[:, :, Sk - W:, :], rep, axis=1)
        v = (lambda x, n, axis: torch.repeat_interleave(x, n, dim=axis))(v_cache[:, :, Sk - W:, :], rep, axis=1)
        scores = torch.einsum("bhqd,bhkd->bhqk", q, k) * (Dh ** -0.5)
        p = _softmax(scores, axis=-1)
        o = torch.einsum("bhqk,bhkd->bhqd", p, v)
        return (lambda x, *d: x.permute(*d))(o, 0, 2, 1, 3).reshape(B, Sq, Hq * Dh) @ wo

    def _B_ref(x, w_gate, w_up, w_down):
        g = torch.einsum("bsd,df->bsf", x, w_gate)
        u = torch.einsum("bsd,df->bsf", x, w_up)
        h = _sigmoid(g) * u
        return torch.einsum("bsf,fd->bsd", h, w_down)

    x = A_x
    h = x + _A_ref(_layernorm(x, axis=-1), A_k_cache, A_v_cache, A_wq, A_wo)
    h2 = h + _B_ref(_layernorm(h, axis=-1), B_w_gate, B_w_up, B_w_down)
    return h2
```

```python
import re

TRANS = ("v_exp_f32", "v_log_f32", "v_rcp_f32", "v_rsq_f32", "v_sqrt_f32", "v_sin_f32", "v_cos_f32")
REG = re.compile(r"^(-|abs\()?([vas])(\d+|\[(\d+):(\d+)\])\)?$")

def regs_of(tok):
    tok = tok.strip()
    if tok in ("vcc",): return {"vcc_lo", "vcc_hi"}
    if tok in ("vcc_lo", "vcc_hi", "m0", "exec_lo", "exec_hi"): return {tok}
    if tok == "exec": return {"exec_lo", "exec_hi"}
    m = REG.match(tok)
    if not m: return set()
    k = m.group(2)
    if m.group(4) is not None:
        return {f"{k}{i}" for i in range(int(m.group(4)), int(m.group(5)) + 1)}
    return {f"{k}{m.group(3)}"}

class Ins:
    __slots__ = ("text", "op", "cls", "w", "r", "dpp", "srcc", "ab", "states", "data", "ldst")

def parse(text):
    t = text.split(";")[0].strip()
    I = Ins(); I.text = text; I.w = set(); I.r = set(); I.dpp = False; I.srcc = set(); I.ab = set(); I.states = 1; I.data = set(); I.ldst = set()
    parts = t.split(None, 1)
    op = parts[0]; I.op = op
    rest = parts[1] if len(parts) > 1 else ""
    ops = [x.strip() for x in rest.split(",")]
    mods = ""
    if ops and ops[-1]:
        rest2 = re.sub(r"\b(quad_perm|op_sel|op_sel_hi|neg_lo|neg_hi):\[[^\]]*\]", lambda m: m.group(0).replace(",", "_"), rest)
        ops = [x.strip() for x in rest2.split(",")]
        l = ops[-1].split()
        ops[-1] = l[0]; mods = " ".join(l[1:])
    R = [regs_of(x) for x in ops]
    if op.startswith("v_mfma"):
        I.cls = "mfma"; I.w = R[0]; I.ab = R[1] | R[2]; I.srcc = R[3]; I.r = I.ab | I.srcc
    elif op.startswith("v_"):
        I.cls = "valu"
        I.dpp = ("_dpp" in op) or ("row_" in mods) or ("quad_perm" in mods)
        if op.startswith("v_permlane") and "swap" in op:
            I.w = R[0] | R[1]; I.r = R[0] | R[1]
        elif op.startswith(("v_add_co", "v_sub_co", "v_addc_co", "v_subb_co")):
            I.w = R[0] | R[1]; I.r = set().union(*R[2:])
        else:
            I.w = R[0]; I.r = set().union(*R[1:]) if len(R) > 1 else set()
            if op.startswith(("v_dot2c", "v_fmac", "v_writelane")) or I.dpp:
                I.r |= R[0]
            if op.startswith("v_cndmask") and len(R) == 3: I.r |= {"vcc_lo", "vcc_hi"}
    elif op.startswith(("buffer_", "global_")):
        I.cls = "vmem"
        if op in ("buffer_inv", "buffer_wbl2"):
            pass
        elif op.startswith("buffer_load"):
            if "lds" in mods.split():
                I.r = set().union(*R) | {"m0"}
            else:
                I.ldst = R[0]; I.r = set().union(*R[1:])
        elif op.startswith("global_load_lds"):
            I.r = set().union(*R) | {"m0"}
        elif op.startswith("global_load"):
            I.ldst = R[0]; I.r = set().union(*R[1:])
        elif op.startswith("buffer_store") or op.startswith("buffer_atomic"):
            I.r = set().union(*R); I.data = R[0]
            if op.startswith("buffer_atomic") and "sc0" in mods.split(): I.ldst = R[0]
        elif op.startswith("global_store"):
            I.r = set().union(*R); I.data = R[1]
        elif op.startswith("global_atomic"):
            if len(R) == 4:
                I.ldst = R[0]; I.r = set().union(*R[1:])
            else:
                I.r = set().union(*R)
        if not (op.endswith("x3") or op.endswith("x4")): I.data = set()
    elif op.startswith("ds_"):
        I.cls = "ds"
        if op.startswith(("ds_read", "ds_bpermute", "ds_permute", "ds_swizzle")) or "_rtn" in op:
            I.ldst = R[0]; I.r = set().union(*R[1:])
        else:
            I.r = set().union(*R)
    elif op == "s_nop":
        I.cls = "salu"; I.states = int(ops[0], 0) + 1
    elif op.startswith("s_"):
        I.cls = "salu"
        if op.startswith(("s_cmp", "s_waitcnt", "s_barrier", "s_branch", "s_cbranch", "s_endpgm", "s_sleep", "s_setprio", "s_bitcmp")):
            I.r = set().union(*R) if R else set()
        else:
            I.w = R[0]; I.r = set().union(*R[1:]) if len(R) > 1 else set()
    else:
        raise ValueError("unknown op " + text)
    return I

def isv(s): return {x for x in s if x[0] in "va" and x[1:].isdigit()}
def iss(s): return {x for x in s if (x[0] == "s" and x[1:].isdigit()) or x.startswith("vcc")}

def need(P, C):
    n = 0
    if P.cls == "valu":
        pv = isv(P.w); ps = iss(P.w)
        isdot = P.op.startswith("v_dot")
        if C.cls == "mfma" and pv & C.r: n = max(n, 3 if isdot else 2)
        if C.cls == "valu":
            if C.dpp and pv & C.r: n = max(n, 2)
            if C.op.startswith("v_permlane") and pv & C.r: n = max(n, 2)
            if C.op.startswith(("v_readlane", "v_readfirstlane")) and pv & C.r: n = max(n, 1)
            if P.op.startswith(TRANS) and pv & C.r: n = max(n, 1)
            if ps & C.r: n = max(n, 4 if C.op.startswith(("v_readlane", "v_writelane")) else 2)
            if "sdwa" in P.op and pv & (C.r | C.w): n = max(n, 1)
        if isdot and pv & (C.r | C.w | C.ldst):
            same = C.op == P.op
            if same:
                srcs = C.r - C.w if C.op.startswith("v_dot2c") else None
                if srcs is None:
                    toks = [x.strip() for x in C.text.split(";")[0].split(None, 1)[1].split(",")]
                    srcs = regs_of(toks[1]) | regs_of(toks[2])
                if pv & srcs: n = max(n, 3)
            else:
                n = max(n, 3)
        if P.op.startswith(TRANS) and C.cls in ("vmem", "ds", "mfma") and pv & C.r: n = max(n, 2)
        if C.cls == "vmem" and ps & C.r: n = max(n, 5)
    if P.cls == "mfma":
        big = "32x32" in P.op
        if C.cls == "mfma":
            if P.w & C.ab: n = max(n, 12 if big else 8)
            if P.w & C.srcc and not (P.w == C.srcc and P.op == C.op): n = max(n, 10 if big else 6)
            if P.w & C.w and not (P.w == C.srcc and P.op == C.op): n = max(n, 10 if big else 6)
        else:
            if P.w & (C.r | C.w | C.ldst): n = max(n, 12 if big else 8)
            if C.cls == "valu" and P.srcc & C.w: n = max(n, 7 if big else 3)
    if P.cls == "salu" and "m0" in P.w and C.cls == "vmem" and "m0" in C.r: n = max(n, 1)
    if P.cls == "vmem" and P.data and (P.data & (C.w | C.ldst)): n = max(n, 2)
    return n

class Asm:
    def __init__(self):
        self.lines = []
        self.hist = []
        self.vm = []
        self.npad = 0
    def raw(self, s): self.lines.append(s)
    def label(self, l): self.lines.append(l + ":")
    def __call__(self, text, tag=None, track=True):
        for t in text.strip().split("\n"):
            t = t.strip()
            if not t or t.startswith(";"):
                continue
            if t.endswith(":"):
                self.lines.append(t); continue
            I = parse(t)
            dist = 0; pad = 0
            for P in reversed(self.hist):
                if dist >= 12: break
                pad = max(pad, need(P, I) - dist)
                dist += P.states
            if pad > 0:
                nop = parse(f"s_nop {pad-1}")
                self.lines.append("    " + nop.text); self.hist.append(nop); self.npad += pad
            self.lines.append("    " + t)
            self.hist.append(I)
            if len(self.hist) > 40: self.hist = self.hist[-20:]
            if I.cls == "vmem" and track:
                self.vm.append(tag)
            if I.op == "s_waitcnt":
                m = re.search(r"vmcnt\((\d+)\)", t)
                if m:
                    n = int(m.group(1))
                    self.vm = self.vm[len(self.vm) - n:] if n < len(self.vm) and n > 0 else ([] if n == 0 else self.vm)
    def fence(self, n=12):
        self(f"s_nop {n-1}")
    def vmwait(self, tag, extra=""):
        idx = [i for i, t in enumerate(self.vm) if t == tag]
        if not idx:
            if extra: self(f"s_waitcnt {extra}")
            return
        n = len(self.vm) - 1 - idx[-1]
        assert n <= 63
        self(f"s_waitcnt vmcnt({n}) {extra}".strip())
    def text(self): return "\n".join(self.lines) + "\n"
```

```python
import sys
sys.path.insert(0, "gen")
from asmlib import Asm
NAME = "sequential_preLN__sliding_block_cached__glu_gated_glu__decode"
HEADER = open("cdna_kernels/" + NAME + ".s.ref").read().split("; Override launch")[0]

QP   = 0x000000
OS   = 0x080000
ACC  = 0x090000
HH   = 0x098000
SIG  = 0x0A0000
STAMP = 0x100000
XN   = 0
SM   = 10752
WQL  = 16384
EXL  = 36864
ESTR = 1088
WSTR = 20 * ESTR
LDS_BYTES = EXL + 4 * WSTR
XSTR = 1312
SPIN = 1 << 16

def gen(W=5, WR=6, stamps=False, nex=8, ex_at=72, ex_every=4, dbgdump=False, qk_at=64, poll_at=52):
    a = Asm()
    a.raw(HEADER.rstrip())
    a.raw(f"; @launch grid=(256,1,1) block=(256,1,1) lds={LDS_BYTES}")
    a.raw('.amdgcn_target "amdgcn-amd-amdhsa--gfx950"')
    a.raw(".text")
    a.raw(f".globl {NAME}_kernel")
    a.raw(".p2align 8")
    a.raw(f".type {NAME}_kernel,@function")
    a.raw(f"{NAME}_kernel:")
    nstamp = [0]
    def stamp(i):
        if stamps:
            a(f"s_memrealtime s[{70+2*i}:{71+2*i}]")
    uid = [0]
    def lab(p):
        uid[0] += 1
        return f"L_{p}{uid[0]}"
    if stamps:
        for i in range(1, 14): a(f"s_mov_b32 s{70+2*i}, 0")
    stamp(0)
    a(f"""
    s_cmp_ge_u32 s2, 256
    s_cbranch_scc1 L_end
    s_load_dwordx8 s[8:15], s[0:1], 0
    s_load_dwordx16 s[16:31], s[0:1], 32
    v_lshrrev_b32 v52, 6, v0
    v_and_b32 v1, 63, v0
    v_readfirstlane_b32 s3, v52
    s_lshr_b32 s4, s2, 5
    s_and_b32 s5, s2, 31
    v_lshlrev_b32 v2, 4, v0
    v_lshrrev_b32 v52, 5, v0
    v_and_b32 v53, 31, v0
    v_mul_u32_u24 v95, 1280, v52
    v_lshl_add_u32 v95, v53, 3, v95
    s_lshl_b32 s6, s2, 20
    s_add_u32 s6, s6, 0xC0000
    s_lshr_b32 s56, s4, 1
    s_and_b32 s57, s4, 1
    s_mul_i32 s58, s56, 160
    s_mul_i32 s59, s3, 40
    s_add_u32 s58, s58, s59
    v_lshrrev_b32 v52, 3, v1
    v_add_u32 v52, s58, v52
    v_lshlrev_b32 v52, 13, v52
    v_and_b32 v53, 7, v1
    v_lshl_add_u32 v52, v53, 4, v52
    s_lshl_b32 s58, s5, 8
    s_lshl_b32 s59, s57, 7
    s_add_u32 s58, s58, s59
    v_add_u32 v94, s58, v52
    s_mul_i32 s7, s3, 5120
    s_add_u32 s7, s7, {WQL}
    s_mov_b32 s34, 0x40000
    s_mov_b32 s35, 0x20000
    s_mov_b32 s38, 0x40000
    s_mov_b32 s39, 0x20000
    s_mov_b32 s42, 5242880
    s_mov_b32 s43, 0x20000
    s_waitcnt lgkmcnt(0)
    """)
    for j in range(5):
        a(f"global_load_dwordx2 v[{52+2*j}:{53+2*j}], v95, s[8:9] offset:{j*256}", tag="x")
    a("""
    s_mov_b32 s40, s14
    s_mov_b32 s41, s15
    s_add_u32 s32, s10, s6
    s_addc_u32 s33, s11, 0
    s_add_u32 s36, s12, s6
    s_addc_u32 s37, s13, 0
    """)
    for e in range(5):
        a(f"s_add_u32 m0, s7, {e*1024}")
        a(f"s_mov_b32 s58, {e*65536}")
        a(f"buffer_load_dwordx4 v94, s[40:43], s58 offen nt lds", tag="wq")

    def kreg(i):
        return f"v[{96+4*i}:{99+4*i}]" if i < 40 else f"a[{4*(i-40)}:{4*(i-40)+3}]"
    def vreg(i):
        return f"a[{96+4*i}:{99+4*i}]" if i < 40 else f"a[{4*(i-40)}:{4*(i-40)+3}]"
    Wmax = max(W, WR)
    def window():
        a(f"s_waitcnt vmcnt({Wmax-1})")
        if W != WR:
            l = lab("w")
            a.raw(f"    s_cbranch_vccnz {l}")
            a.raw(f"    s_waitcnt vmcnt({W-1})")
            a.raw(f"{l}:")
    def issue(n):
        i = n % 64
        a(f"s_mov_b32 s6, {i*4096}")
        if n < 64: a(f"buffer_load_dwordx4 {kreg(i)}, v2, s[32:35], s6 offen nt", tag=f"K{i}")
        else:      a(f"buffer_load_dwordx4 {vreg(i)}, v2, s[36:39], s6 offen nt", tag=f"V{i}")
    for n in range(W):
        issue(n)
    a(f"""
    s_and_b32 s58, s5, 7
    s_mul_i32 s58, s58, 12
    s_lshr_b32 s59, s5, 3
    s_mul_i32 s59, s59, 3
    s_add_u32 s58, s58, s59
    s_add_u32 s58, s58, s4
    s_sub_u32 s58, s58, 5
    s_sub_u32 s59, s58, 40
    s_cmp_lt_u32 s58, 40
    s_cselect_b32 s60, 2, 1
    s_cselect_b32 s61, s58, s59
    s_cmp_ge_u32 s58, 94
    s_cselect_b32 s60, 3, s60
    s_cmp_lt_u32 s4, 5
    s_cselect_b32 s60, 0, s60
    s_cselect_b32 s61, s4, s61
    s_cselect_b64 vcc, 0, -1
    """)
    lw, lf, ld, lj = lab("rw"), lab("rf"), lab("rd"), lab("rj")
    a(f"""
    s_mov_b32 s47, 0x20000
    s_mov_b32 s51, 0x20000
    s_mov_b32 s64, 0
    s_mul_i32 s65, s3, {WSTR}
    s_add_u32 s65, s65, {EXL}
    s_cmp_eq_u32 s60, 1
    s_cbranch_scc1 {lf}
    s_cmp_eq_u32 s60, 0
    s_cbranch_scc1 {lw}
    s_mov_b32 s44, s24
    s_mov_b32 s45, s25
    s_cmp_eq_u32 s60, 2
    s_cselect_b32 s46, 2211840, 0
    s_mov_b32 s48, s24
    s_mov_b32 s49, s25
    s_mov_b32 s50, s46
    s_mov_b32 s62, 40960
    s_mov_b32 s63, 40960
    s_mul_i32 s58, s3, 448
    v_lshrrev_b32 v62, 1, v1
    v_add_u32 v62, s58, v62
    v_mul_u32_u24 v62, 1280, v62
    v_and_b32 v63, 1, v1
    v_lshl_add_u32 v62, v63, 4, v62
    s_lshl_b32 s58, s61, 5
    v_add_u32 v3, s58, v62
    s_branch {lj}
    {lf}:
    s_mov_b32 s44, s20
    s_mov_b32 s45, s21
    s_mov_b32 s46, 2211840
    s_mov_b32 s48, s22
    s_mov_b32 s49, s23
    s_mov_b32 s50, 2211840
    s_mov_b32 s62, 0
    s_mov_b32 s63, 55296
    s_mul_i32 s58, s3, 160
    v_lshrrev_b32 v62, 2, v1
    v_add_u32 v62, s58, v62
    v_mul_u32_u24 v62, 3456, v62
    v_lshrrev_b32 v63, 4, v1
    v_and_b32 v63, 2, v63
    v_xor_b32 v63, v63, v1
    v_and_b32 v63, 3, v63
    v_lshl_add_u32 v62, v63, 4, v62
    s_lshl_b32 s58, s61, 6
    v_add_u32 v3, s58, v62
    s_branch {lj}
    {lw}:
    s_mov_b32 s44, s16
    s_mov_b32 s45, s17
    s_mov_b32 s46, 5242880
    s_mov_b32 s48, s16
    s_mov_b32 s49, s17
    s_mov_b32 s50, 5242880
    s_mov_b32 s62, 5120
    s_mov_b32 s63, 5120
    s_lshl_b32 s58, s5, 7
    s_lshl_b32 s59, s3, 5
    s_add_u32 s58, s58, s59
    v_lshrrev_b32 v63, 4, v1
    v_add_u32 v62, s58, v63
    v_mul_u32_u24 v62, 1280, v62
    v_lshlrev_b32 v63, 1, v63
    v_xor_b32 v63, v63, v1
    v_and_b32 v63, 15, v63
    v_lshl_add_u32 v62, v63, 4, v62
    s_lshl_b32 s58, s61, 8
    v_add_u32 v3, s58, v62
    {lj}:
    """)
    def exdma(e):
        srd = "s[44:47]" if e % 2 == 0 else "s[48:51]"
        a(f"s_add_u32 m0, s65, {e*ESTR}")
        a(f"buffer_load_dwordx4 v3, {srd}, s64 offen nt lds", tag=f"E{e}")
        a(f"s_add_u32 s64, s64, s{62 + e % 2}")
    a("""
    v_and_b32 v62, 1, v1
    v_mov_b32 v63, 0xffff
    v_lshlrev_b32 v62, 4, v62
    v_lshlrev_b32 v62, v62, v63
    v_bfe_u32 v63, v1, 1, 2
    """)
    for r in range(4):
        a(f"v_cmp_eq_u32 s[58:59], {r}, v63")
        a(f"v_cndmask_b32 v{4+r}, 0, v62, s[58:59]")
    l1, l2, l3 = lab("c"), lab("c"), lab("c")
    a(f"""
    s_lshl_b32 s58, s5, 3
    s_add_u32 s58, s58, s4
    s_lshl_b32 s58, s58, 8
    s_add_u32 s58, s58, {OS}
    v_lshl_add_u32 v93, v1, 2, s58
    v_mov_b32 v62, -1
    s_cmp_lg_u32 s3, 0
    s_cbranch_scc1 {l1}
    """)
    a("global_store_dword v93, v62, s[30:31] sc1", track=False)
    a(f"""
    {l1}:
    s_lshl_b32 s58, s61, 9
    s_add_u32 s58, s58, {HH}
    v_lshl_add_u32 v63, v0, 2, s58
    s_cmp_lg_u32 s60, 1
    s_cbranch_scc1 {l2}
    s_cmp_gt_u32 s3, 1
    s_cbranch_scc1 {l2}
    """)
    a("global_store_dword v63, v62, s[30:31] sc1", track=False)
    a(f"""
    {l2}:
    s_lshl_b32 s58, s2, 10
    s_add_u32 s58, s58, {SIG}
    v_lshl_add_u32 v63, v0, 2, s58
    v_mov_b32 v62, 0
    s_cmp_ge_u32 s2, 16
    s_cbranch_scc1 {l3}
    """)
    a("global_store_dword v63, v62, s[30:31] sc1", track=False)
    a(f"{l3}:")

    F = list(range(62, 82))
    def red32(r, t, op="v_add_f32"):
        o = []
        for k in (8, 4, 2, 1):
            o.append(f"{op}_dpp v{r}, v{r}, v{r} row_ror:{k} row_mask:0xf bank_mask:0xf")
        o += [f"v_mov_b32 v{t}, v{r}", f"v_permlane16_swap_b32 v{r}, v{t}", f"{op} v{r}, v{r}, v{t}"]
        return o
    def rbf(r):
        return [f"v_cvt_pk_bf16_f32 v{r}, v{r}, v{r}", f"v_lshlrev_b32 v{r}, 16, v{r}"]
    chunks = {}
    def at(n, f): chunks.setdefault(n, []).append(f)

    def ln1_a():
        a.vmwait("x")
        for j in range(5):
            for t in range(2):
                a(f"v_lshlrev_b32 v{F[4*j+2*t]}, 16, v{52+2*j+t}")
                a(f"v_and_b32 v{F[4*j+2*t+1]}, 0xffff0000, v{52+2*j+t}")
        l = lab("ai")
        a(f"""
        v_lshl_add_u32 v92, v95, 1, 0
        v_add_u32 v92, {ACC}, v92
        s_cmp_lg_u32 s2, 0
        s_cbranch_scc1 {l}
        """)
        for j in range(5):
            a(f"global_store_dwordx4 v92, v[{F[4*j]}:{F[4*j+3]}], s[30:31] offset:{j*512} sc1", track=False)
        a(f"{l}:")
        a(f"v_pk_add_f32 v[82:83], v[{F[0]}:{F[1]}], v[{F[2]}:{F[3]}]")
        for k in range(2, 10):
            a(f"v_pk_add_f32 v[82:83], v[82:83], v[{F[2*k]}:{F[2*k+1]}]")
        a("v_add_f32 v82, v82, v83")
        a("\n".join(red32(82, 83)))
        a("v_mul_f32 v82, 0x3acccccd, v82")
    def ln1_b():
        a("v_mov_b32 v84, 0\nv_mov_b32 v85, 0\nv_mov_b32 v83, v82")
        for k in range(10):
            a(f"v_pk_add_f32 v[86:87], v[{F[2*k]}:{F[2*k+1]}], v[82:83] neg_lo:[0,1] neg_hi:[0,1]")
            a(f"v_pk_fma_f32 v[84:85], v[86:87], v[86:87], v[84:85]")
        a("v_add_f32 v84, v84, v85")
        a("\n".join(red32(84, 85)))
        a("v_mul_f32 v84, 0x3acccccd, v84")
        a("\n".join(rbf(84)))
        a("v_add_f32 v84, 0x3727c5ac, v84")
        a("\n".join(rbf(84)))
        a("v_sqrt_f32 v84, v84")
        a("\n".join(rbf(84)))
        a("v_rcp_f32 v84, v84")
        a("\n".join(rbf(82)))
        a("v_mov_b32 v83, v82\nv_mov_b32 v85, v84")
    def ln1_c(js):
        def f():
            for j in js:
                for t in range(2):
                    k = 2 * j + t
                    x0, x1 = F[2*k], F[2*k+1]
                    a(f"v_pk_add_f32 v[{x0}:{x1}], v[{x0}:{x1}], v[82:83] neg_lo:[0,1] neg_hi:[0,1]")
                    a(f"v_cvt_pk_bf16_f32 v86, v{x0}, v{x1}")
                    a(f"v_lshlrev_b32 v{x0}, 16, v86")
                    a(f"v_and_b32 v{x1}, 0xffff0000, v86")
                    a(f"v_pk_mul_f32 v[{x0}:{x1}], v[{x0}:{x1}], v[84:85]")
                    a(f"v_cvt_pk_bf16_f32 v{52+k}, v{x0}, v{x1}")
                a(f"ds_write_b64 v91, v[{52+2*j}:{53+2*j}] offset:{XN + j*256}")
        return f
    def ln1_pre():
        a(f"""
        v_lshrrev_b32 v90, 5, v0
        v_mul_u32_u24 v91, {XSTR}, v90
        v_and_b32 v90, 31, v0
        v_lshl_add_u32 v91, v90, 3, v91
        """)
    def qgemm_a():
        a.vmwait("wq", "lgkmcnt(0)")
        a("s_barrier")
        a(f"""
        v_lshrrev_b32 v54, 4, v1
        v_bfe_u32 v55, v1, 2, 2
        v_lshl_add_u32 v55, v54, 3, v55
        v_lshlrev_b32 v52, 7, v55
        v_and_b32 v55, 3, v1
        v_lshl_add_u32 v52, v55, 3, v52
        s_lshl_b32 s58, s3, 5
        s_add_u32 s58, s58, {WQL}
        v_add_u32 v52, s58, v52
        v_and_b32 v55, 7, v1
        v_mul_u32_u24 v90, {XSTR}, v55
        v_lshl_add_u32 v90, v54, 4, v90
        s_mul_i32 s58, s56, 320
        v_add_u32 v53, s58, v90
        """)
        for s in range(5):
            a(f"ds_read_b64_tr_b16 v[{216+4*s}:{217+4*s}], v52 offset:{s*4096}")
            a(f"ds_read_b64_tr_b16 v[{218+4*s}:{219+4*s}], v52 offset:{s*4096+512}")
            a(f"ds_read_b128 v[{236+4*s}:{239+4*s}], v53 offset:{XN + s*64}")
        a(f"""
        v_lshlrev_b32 v55, 11, v55
        v_lshl_add_u32 v54, v54, 4, v55
        s_lshl_b32 s58, s5, 14
        s_lshl_b32 s59, s4, 8
        s_add_u32 s58, s58, s59
        s_lshl_b32 s59, s3, 6
        s_add_u32 s58, s58, s59
        s_add_u32 s58, s58, {QP}
        v_add_u32 v54, s58, v54
        """)
    def qgemm_b():
        a("s_waitcnt lgkmcnt(0)")
        for s in range(5):
            c = "0" if s == 0 else "v[56:59]"
            a(f"v_mfma_f32_16x16x32_bf16 v[56:59], v[{216+4*s}:{219+4*s}], v[{236+4*s}:{239+4*s}], {c}")
        a("s_mov_b32 exec_lo, 0x00ff00ff\ns_mov_b32 exec_hi, 0x00ff00ff")
        a("global_store_dwordx4 v54, v[56:59], s[30:31] sc1", tag="qst")
        a("s_mov_b64 exec, -1")
    def qsignal():
        a.vmwait("qst")
        a("s_barrier")
        l = lab("qs")
        a(f"""
        s_lshl_b32 s58, s5, 3
        v_mov_b32 v52, s58
        v_mov_b32 v53, 1
        s_cmp_lg_u32 s3, 0
        s_cbranch_scc1 {l}
        s_mov_b64 exec, 1
        """)
        a("global_atomic_add v52, v53, s[28:29]", track=False)
        a(f"s_mov_b64 exec, -1\n{l}:")
        stamp(1)
    def qpoll_a():
        a("v_and_b32 v52, 31, v1\nv_lshlrev_b32 v52, 3, v52")
        a("global_load_dword v53, v52, s[28:29] sc1", tag="poll")
    def qpoll_b():
        a.vmwait("poll")
        l0, l1 = lab("pl"), lab("pd")
        a(f"""
        s_mov_b32 s66, 0
        {l0}:
        v_cmp_gt_u32 s[58:59], 8, v53
        s_cmp_eq_u64 s[58:59], 0
        s_cbranch_scc1 {l1}
        s_add_u32 s66, s66, 1
        s_cmp_gt_u32 s66, {SPIN}
        s_cbranch_scc1 {l1}
        s_sleep 8
        """)
        a("global_load_dword v53, v52, s[28:29] sc1", track=False)
        a.raw("    s_waitcnt vmcnt(0)")
        a(f"s_branch {l0}\n{l1}:")
        stamp(2)
        a(f"""
        v_lshrrev_b32 v52, 4, v1
        v_lshlrev_b32 v52, 9, v52
        v_and_b32 v53, 15, v1
        v_lshl_add_u32 v52, v53, 5, v52
        s_lshl_b32 s58, s5, 14
        s_lshl_b32 s59, s4, 11
        s_add_u32 s58, s58, s59
        s_add_u32 s58, s58, {QP}
        v_add_u32 v52, s58, v52
        """)
        a("global_load_dwordx4 v[56:59], v52, s[30:31] sc1", tag="qg")
        a("global_load_dwordx4 v[60:63], v52, s[30:31] offset:16 sc1", tag="qg")
    def qfin():
        a.vmwait("qg")
        for sw in ("v_permlane32_swap_b32", "v_permlane16_swap_b32"):
            for r in range(8): a(f"v_mov_b32 v{64+r}, v{56+r}")
            for r in range(8): a(f"{sw} v{56+r}, v{64+r}")
            for r in range(8): a(f"v_add_f32 v{56+r}, v{56+r}, v{64+r}")
        for r in range(4): a(f"v_cvt_pk_bf16_f32 v{8+r}, v{56+2*r}, v{57+2*r}")
        a("s_mov_b32 s66, 0xaaaaaaaa\ns_mov_b32 s67, 0xaaaaaaaa\ns_mov_b32 s68, 0xcccccccc\ns_mov_b32 s69, 0xcccccccc")
    P = list(range(36, 52))
    def qk(i0, cnt):
        def f():
            a.vmwait(f"K{i0+cnt-1}")
            for i in range(i0, i0 + cnt):
                t = i % 16
                if i < 40:
                    src = [96 + 4*i + r for r in range(4)]
                else:
                    base = 28 + 4 * (i % 2)
                    src = [base + r for r in range(4)]
                    for r in range(4): a(f"v_accvgpr_read_b32 v{base+r}, a{4*(i-40)+r}")
                a(f"v_dot2_f32_bf16 v{P[t]}, v{src[0]}, v8, 0")
                for r in range(1, 4): a(f"v_dot2_f32_bf16 v{P[t]}, v{src[r]}, v{8+r}, v{P[t]}")
            if (i0 + cnt) % 16 == 0:
                m = (i0 + cnt) // 16 - 1
                for t in range(8):
                    a(f"v_add_f32_dpp v{P[t]}, v{P[t]}, v{P[t]} row_ror:8 row_mask:0xf bank_mask:0x3")
                for t in range(8):
                    a(f"v_add_f32_dpp v{P[t]}, v{P[t+8]}, v{P[t+8]} row_ror:8 row_mask:0xf bank_mask:0xc")
                for t in range(4):
                    a(f"v_add_f32_dpp v{P[t]}, v{P[t]}, v{P[t]} row_ror:12 row_mask:0xf bank_mask:0x5")
                for t in range(4):
                    a(f"v_add_f32_dpp v{P[t]}, v{P[t+4]}, v{P[t+4]} row_ror:4 row_mask:0xf bank_mask:0xa")
                for t in range(4):
                    a(f"v_add_f32_dpp v{P[t]}, v{P[t]}, v{P[t]} quad_perm:[1,0,3,2] row_mask:0xf bank_mask:0xf")
                for t in range(4):
                    a(f"v_add_f32_dpp v{P[t]}, v{P[t]}, v{P[t]} quad_perm:[2,3,0,1] row_mask:0xf bank_mask:0xf")
                a(f"v_cndmask_b32 v{P[0]}, v{P[0]}, v{P[1]}, s[66:67]")
                a(f"v_cndmask_b32 v{P[2]}, v{P[2]}, v{P[3]}, s[66:67]")
                a(f"v_cndmask_b32 v{12+m}, v{P[0]}, v{P[2]}, s[68:69]")
        return f
    def red64(r, t, op):
        o = red32(r, t, op)
        o += [f"v_mov_b32 v{t}, v{r}", f"v_permlane32_swap_b32 v{r}, v{t}", f"{op} v{r}, v{r}, v{t}"]
        return o
    def softmax_a():
        a("v_cvt_pk_bf16_f32 v52, v12, v13\nv_cvt_pk_bf16_f32 v53, v14, v15")
        a("v_lshlrev_b32 v12, 16, v52\nv_and_b32 v13, 0xffff0000, v52\nv_lshlrev_b32 v14, 16, v53\nv_and_b32 v15, 0xffff0000, v53")
        for m in range(4): a(f"v_mul_f32 v{12+m}, 0x3db504f3, v{12+m}")
        a("v_cvt_pk_bf16_f32 v52, v12, v13\nv_cvt_pk_bf16_f32 v53, v14, v15")
        a("v_lshlrev_b32 v12, 16, v52\nv_and_b32 v13, 0xffff0000, v52\nv_lshlrev_b32 v14, 16, v53\nv_and_b32 v15, 0xffff0000, v53")
        if dbgdump:
            a(f"s_lshl_b32 s58, s2, 12\ns_lshl_b32 s59, s3, 10\ns_add_u32 s58, s58, s59\ns_add_u32 s58, s58, 0x200000\nv_lshl_add_u32 v54, v1, 2, s58")
            for m in range(4): a(f"global_store_dword v54, v{12+m}, s[30:31] offset:{m*256}", track=False)
        a("v_max_f32 v52, v12, v13\nv_max3_f32 v52, v52, v14, v15")
        a("\n".join(red64(52, 53, "v_max_f32")))
        for m in range(4): a(f"v_sub_f32 v{12+m}, v{12+m}, v52")
        for m in range(4): a(f"v_mul_f32 v{12+m}, 0x3fb8aa3b, v{12+m}")
        for m in range(4): a(f"v_exp_f32 v{12+m}, v{12+m}")
        a("v_add_f32 v53, v12, v13\nv_add_f32 v54, v14, v15\nv_add_f32 v53, v53, v54")
        a("\n".join(red64(53, 54, "v_add_f32")))
        a(f"s_lshl_b32 s58, s3, 3\nv_mov_b32 v54, s58\nds_write_b64 v54, v[52:53] offset:{SM}")
    def softmax_b():
        a("s_waitcnt lgkmcnt(0)\ns_barrier\nv_mov_b32 v54, 0")
        a(f"ds_read_b128 v[56:59], v54 offset:{SM}\nds_read_b128 v[60:63], v54 offset:{SM+16}")
        a("s_waitcnt lgkmcnt(0)")
        a("v_max_f32 v54, v56, v58\nv_max3_f32 v54, v54, v60, v62")
        for r in (56, 58, 60, 62, 52): a(f"v_sub_f32 v{r}, v{r}, v54")
        for r in (56, 58, 60, 62, 52): a(f"v_mul_f32 v{r}, 0x3fb8aa3b, v{r}")
        for r in (56, 58, 60, 62, 52): a(f"v_exp_f32 v{r}, v{r}")
        a("v_mul_f32 v54, v56, v57\nv_fmac_f32 v54, v58, v59\nv_fmac_f32 v54, v60, v61\nv_fmac_f32 v54, v62, v63")
        a("v_rcp_f32 v54, v54\nv_mul_f32 v52, v52, v54")
        for m in range(4): a(f"v_mul_f32 v{12+m}, v{12+m}, v52")
        for m in range(4): a(f"v_cvt_pk_bf16_f32 v{12+m}, v{12+m}, v{12+m}")
        build(0)
        stamp(3)
    def build(i):
        b = 20 + 4 * (i % 2)
        for r in range(4):
            a(f"v_and_b32_dpp v{b+r}, v{12 + i//16}, v{4+r} row_newbcast:{i%16} row_mask:0xf bank_mask:0xf")
    def pv(i):
        if i + 1 < 64: build(i + 1)
        a.vmwait(f"V{i}")
        b = 20 + 4 * (i % 2)
        c = "0" if i == 0 else "v[16:19]"
        a(f"v_mfma_f32_16x16x32_bf16 v[16:19], v[{b}:{b+3}], {vreg(i)}, {c}")

    n0 = W
    at(n0 - 1, ln1_pre); at(n0 - 1, ln1_a)
    at(n0, ln1_b)
    at(n0 + 1, ln1_c([0, 1, 2])); at(n0 + 2, ln1_c([3, 4]))
    at(n0 + 3, qgemm_a); at(n0 + 4, qgemm_b)
    at(n0 + 4 + Wmax, qsignal)
    at(poll_at, qpoll_a); at(poll_at + Wmax, qpoll_b); at(poll_at + 2 * Wmax, qfin)
    q0 = max(qk_at, poll_at + 2 * Wmax + 1)
    for k in range(16): at(q0 + k, qk(4 * k, 4))
    at(q0 + 16, softmax_a); at(q0 + 17, softmax_b)
    assert q0 + 10 < 104
    pvdone = [0]
    for f in chunks.get(n0 - 1, []): f()
    exi = 0
    for n in range(n0, 128):
        window()
        issue(n)
        if n >= ex_at and (n - ex_at) % ex_every == 0 and exi < nex:
            window(); exdma(exi); exi += 1
        for f in chunks.get(n, []): f()
        if n > q0 + 17:
            lim = n - 64 - Wmax + 1
            c = 0
            while pvdone[0] < lim and c < 4:
                pv(pvdone[0]); pvdone[0] += 1; c += 1
    assert exi == nex
    a(f"""
    v_and_b32 v52, 15, v1
    v_bfe_u32 v53, v1, 4, 1
    v_lshlrev_b32 v54, 5, v52
    v_lshl_add_u32 v54, v53, 4, v54
    s_lshl_b32 s58, s3, 9
    v_add_u32 v54, s58, v54
    v_lshlrev_b32 v55, 3, v1
    """)
    while pvdone[0] < 64:
        pv(pvdone[0]); pvdone[0] += 1
    stamp(4)
    OP = SM + 64
    a(f"ds_write_b128 v54, v[16:19] offset:{OP}")
    a("s_waitcnt vmcnt(0) lgkmcnt(0)\ns_barrier")
    lp = lab("pub")
    a(f"s_cmp_lg_u32 s3, 0\ns_cbranch_scc1 {lp}")
    for w in range(4): a(f"ds_read_b64 v[{56+2*w}:{57+2*w}], v55 offset:{OP + w*512}")
    a("""
    s_waitcnt lgkmcnt(0)
    v_pk_add_f32 v[56:57], v[56:57], v[58:59]
    v_pk_add_f32 v[60:61], v[60:61], v[62:63]
    v_pk_add_f32 v[56:57], v[56:57], v[60:61]
    v_cvt_pk_bf16_f32 v56, v56, v57
    v_min_u32 v56, -2, v56
    """)
    a("global_store_dword v93, v56, s[30:31] sc1", track=False)
    a(f"{lp}:")
    stamp(5)
    a("s_cmp_eq_u32 s60, 1\ns_cbranch_scc1 L_F\ns_cmp_eq_u32 s60, 2\ns_cbranch_scc1 L_D\ns_cmp_eq_u32 s60, 3\ns_cbranch_scc1 L_out")
    a(f"""
    v_lshrrev_b32 v53, 4, v1
    v_and_b32 v54, 7, v1
    v_lshlrev_b32 v54, 8, v54
    v_lshl_add_u32 v54, v53, 4, v54
    s_lshl_b32 s58, s5, 11
    s_add_u32 s58, s58, {OS}
    v_add_u32 v54, s58, v54
    """)
    def oloads():
        for s in range(4): a(f"global_load_dwordx4 v[{64+4*s}:{67+4*s}], v54, s[30:31] offset:{s*64} sc1")
    oloads()
    a(f"""
    v_mul_u32_u24 v55, {2*ESTR}, v53
    v_bfe_u32 v56, v1, 2, 2
    v_lshl_add_u32 v55, v56, 8, v55
    v_and_b32 v57, 3, v1
    v_lshl_add_u32 v55, v57, 3, v55
    v_add_u32 v55, {EXL}, v55
    s_lshl_b32 s58, s3, 1
    v_xor_b32 v57, s58, v56
    v_lshl_add_u32 v58, v57, 5, v55
    v_xor_b32 v57, 1, v57
    v_lshl_add_u32 v59, v57, 5, v55
    v_add_u32 v60, {ESTR}, v58
    v_add_u32 v61, {ESTR}, v59
    """)
    for tn in range(2):
        for s in range(4):
            r = 96 + tn*16 + s*4
            a(f"ds_read_b64_tr_b16 v[{r}:{r+1}], v{58+tn} offset:{s*WSTR}")
            a(f"ds_read_b64_tr_b16 v[{r+2}:{r+3}], v{60+tn} offset:{s*WSTR}")
    a(f"""
    v_and_b32 v56, 1, v53
    v_mul_u32_u24 v56, 10240, v56
    v_lshrrev_b32 v57, 5, v1
    v_lshl_add_u32 v57, v57, 4, v52
    v_lshl_add_u32 v56, v57, 2, v56
    s_lshl_b32 s58, s61, 9
    s_lshl_b32 s59, s3, 7
    s_add_u32 s58, s58, s59
    s_add_u32 s58, s58, {ACC}
    v_add_u32 v62, s58, v56
    v_add_u32 v63, 5120, v62
    s_mul_i32 s58, s5, 5
    s_add_u32 s58, s58, s4
    s_and_b32 s58, s58, 15
    s_lshl_b32 s58, s58, 7
    s_add_u32 s58, s58, {SIG}
    v_lshlrev_b32 v88, 11, v1
    v_add_u32 v88, s58, v88
    v_mov_b32 v89, 1
    s_mov_b32 s66, 0
    s_mov_b32 s68, 0
    s_mov_b32 s69, -1
    """)
    l0, l1 = lab("wp"), lab("wd")
    a(f"{l0}:\ns_waitcnt vmcnt(0)")
    a("v_max3_u32 v56, v64, v65, v66")
    for r in range(67, 79, 2): a(f"v_max3_u32 v56, v56, v{r}, v{r+1}")
    a("v_max_u32 v56, v56, v79")
    a(f"""
    v_cmp_eq_u32 vcc, -1, v56
    s_cbranch_vccz {l1}
    s_add_u32 s66, s66, 1
    s_cmp_gt_u32 s66, {SPIN}
    s_cbranch_scc1 {l1}
    """)
    oloads()
    a(f"s_branch {l0}\n{l1}:")
    stamp(6)
    a("s_waitcnt lgkmcnt(0)")
    for s in range(4):
        for tn in range(2):
            r = 96 + tn*16 + s*4
            c = "0" if s == 0 else f"v[{80+4*tn}:{83+4*tn}]"
            a(f"v_mfma_f32_16x16x32_bf16 v[{80+4*tn}:{83+4*tn}], v[{64+4*s}:{67+4*s}], v[{r}:{r+3}], {c}")
    for r in range(4): a(f"v_cndmask_b32 v{80+r}, v{80+r}, v{84+r}, s[68:69]")
    for r in range(4): a(f"global_atomic_add_f32 v{62 + r//2}, v{80+r}, s[30:31] offset:{(r%2)*2560}")
    a("s_waitcnt vmcnt(0)\ns_barrier")
    stamp(7)
    a("s_cmp_lg_u32 s3, 0\ns_cbranch_scc1 L_out\ns_mov_b64 exec, 0xff")
    a("global_atomic_add v88, v89, s[30:31]")
    a("s_mov_b64 exec, -1\ns_branch L_out")

    def sigpoll():
        l0, l1 = lab("sp"), lab("sd")
        a(f"""
        s_and_b32 s58, s2, 7
        s_lshl_b32 s58, s58, 11
        s_add_u32 s58, s58, {SIG}
        v_lshl_add_u32 v88, v52, 7, s58
        s_mov_b32 s66, 0
        s_cmp_lg_u32 s3, 0
        s_cbranch_scc1 {l1}
        s_mov_b64 exec, 0xffff
        {l0}:
        global_load_dword v89, v88, s[30:31] sc1
        s_add_u32 s66, s66, 1
        s_cmp_gt_u32 s66, {SPIN}
        s_cbranch_scc1 {l1}
        s_waitcnt vmcnt(0)
        v_cmp_ne_u32 vcc, 10, v89
        s_cbranch_vccnz {l0}
        {l1}:
        s_mov_b64 exec, -1
        s_barrier
        """)
    a.vm = []
    a("L_F:\ns_barrier")
    for e in range(nex, 20): exdma(e)
    a(f"""
    v_lshrrev_b32 v53, 4, v1
    v_lshrrev_b32 v54, 5, v1
    v_mul_u32_u24 v55, {2*ESTR}, v54
    v_and_b32 v54, 1, v53
    v_bfe_u32 v56, v1, 2, 2
    v_lshl_add_u32 v56, v54, 3, v56
    v_lshl_add_u32 v55, v56, 6, v55
    v_and_b32 v56, 3, v1
    v_lshl_add_u32 v55, v56, 3, v55
    v_add_u32 v55, s65, v55
    v_xor_b32 v56, 1, v54
    v_lshl_add_u32 v56, v56, 5, v55
    v_lshl_add_u32 v55, v54, 5, v55
    s_mul_i32 s58, s3, 320
    v_add_u32 v90, s58, v90
    """)
    for s in range(5):
        a.vmwait(f"E{4*s+3}")
        for mu in range(2):
            for n in range(2):
                r = 96 + ((s*2 + mu)*2 + n) * 4
                off = (4*s + mu) * ESTR
                a(f"ds_read_b64_tr_b16 v[{r}:{r+1}], v{55+n} offset:{off}")
                a(f"ds_read_b64_tr_b16 v[{r+2}:{r+3}], v{55+n} offset:{off+256}")
    RP = WQL
    a(f"""
    v_and_b32 v57, 7, v1
    v_lshlrev_b32 v57, 7, v57
    v_bfe_u32 v58, v1, 3, 1
    v_lshl_add_u32 v57, v58, 10, v57
    v_lshl_add_u32 v57, v53, 4, v57
    s_lshl_b32 s58, s3, 11
    v_add_u32 v57, s58, v57
    v_lshlrev_b32 v58, 3, v0
    v_lshrrev_b32 v59, 4, v0
    v_lshlrev_b32 v59, 4, v59
    v_bfe_u32 v60, v0, 1, 2
    v_lshl_add_u32 v59, v60, 7, v59
    v_bfe_u32 v60, v0, 3, 1
    v_lshl_add_u32 v59, v60, 3, v59
    v_and_b32 v60, 1, v0
    v_lshl_add_u32 v59, v60, 2, v59
    s_lshl_b32 s58, s61, 9
    s_add_u32 s58, s58, {HH}
    v_add_u32 v59, s58, v59
    s_mov_b32 s68, 0xff00ff00
    s_mov_b32 s69, 0xff00ff00
    """)
    stamp(6)
    sigpoll()
    stamp(7)
    for j in range(5): a(f"global_load_dwordx4 v[{F[4*j]}:{F[4*j+3]}], v92, s[30:31] offset:{j*512} sc1", tag=f"h{j}")
    a.vmwait("h0")
    a(f"v_pk_add_f32 v[82:83], v[{F[0]}:{F[1]}], v[{F[2]}:{F[3]}]")
    for k in range(2, 10):
        if k % 2 == 0: a.vmwait(f"h{k//2}")
        a(f"v_pk_add_f32 v[82:83], v[82:83], v[{F[2*k]}:{F[2*k+1]}]")
    stamp(8)
    a("v_add_f32 v82, v82, v83")
    a("\n".join(red32(82, 83)))
    a("v_mul_f32 v82, 0x3acccccd, v82\nv_mov_b32 v83, v82")
    for k in range(10):
        a(f"v_pk_add_f32 v[{F[2*k]}:{F[2*k+1]}], v[{F[2*k]}:{F[2*k+1]}], v[82:83] neg_lo:[0,1] neg_hi:[0,1]")
    a(f"v_pk_mul_f32 v[84:85], v[{F[0]}:{F[1]}], v[{F[0]}:{F[1]}]")
    for k in range(1, 10):
        a(f"v_pk_fma_f32 v[84:85], v[{F[2*k]}:{F[2*k+1]}], v[{F[2*k]}:{F[2*k+1]}], v[84:85]")
    a("v_add_f32 v84, v84, v85")
    a("\n".join(red32(84, 85)))
    a("v_mov_b32 v85, 0x3727c5ac\nv_fmac_f32 v85, 0x3acccccd, v84\nv_rsq_f32 v84, v85\nv_mov_b32 v85, v84")
    for j in range(5):
        for t in range(2):
            k = 2*j + t
            a(f"v_pk_mul_f32 v[{F[2*k]}:{F[2*k+1]}], v[{F[2*k]}:{F[2*k+1]}], v[84:85]")
        for t in range(2):
            k = 2*j + t
            a(f"v_cvt_pk_bf16_f32 v{40+k}, v{F[2*k]}, v{F[2*k+1]}")
        a(f"ds_write_b64 v91, v[{40+2*j}:{41+2*j}] offset:{XN + j*256}")
    a("s_waitcnt lgkmcnt(0)\ns_barrier")
    for s in range(5): a(f"ds_read_b128 v[{62+4*s}:{65+4*s}], v90 offset:{XN + s*64}")
    for s in range(5):
        a(f"s_waitcnt lgkmcnt({4-s})")
        for mu in range(2):
            for n in range(2):
                r = 96 + ((s*2 + mu)*2 + n) * 4
                d = 20 + (mu*2 + n) * 4
                c = "0" if s == 0 else f"v[{d}:{d+3}]"
                a(f"v_mfma_f32_16x16x32_bf16 v[{d}:{d+3}], v[{r}:{r+3}], v[{62+4*s}:{65+4*s}], {c}")
    for n in range(2):
        for r in range(4): a(f"v_cndmask_b32 v{20+4*n+r}, v{20+4*n+r}, v{28+4*n+r}, s[68:69]")
        a(f"ds_write_b128 v57, v[{20+4*n}:{23+4*n}] offset:{RP + n*64}")
    a("s_waitcnt lgkmcnt(0)\ns_barrier")
    stamp(9)
    a("s_cmp_gt_u32 s3, 1\ns_cbranch_scc1 L_out")
    for w in range(4):
        for mu in range(2):
            r = 62 + (mu*4 + w) * 2
            a(f"ds_read_b64 v[{r}:{r+1}], v58 offset:{RP + w*2048 + mu*1024}")
    a("""
    s_waitcnt lgkmcnt(0)
    v_pk_add_f32 v[62:63], v[62:63], v[64:65]
    v_pk_add_f32 v[66:67], v[66:67], v[68:69]
    v_pk_add_f32 v[70:71], v[70:71], v[72:73]
    v_pk_add_f32 v[74:75], v[74:75], v[76:77]
    v_pk_add_f32 v[62:63], v[62:63], v[66:67]
    v_pk_add_f32 v[70:71], v[70:71], v[74:75]
    v_mul_f32 v62, 0xbfb8aa3b, v62
    v_mul_f32 v63, 0xbfb8aa3b, v63
    v_exp_f32 v62, v62
    v_exp_f32 v63, v63
    v_add_f32 v62, 1.0, v62
    v_add_f32 v63, 1.0, v63
    v_rcp_f32 v62, v62
    v_rcp_f32 v63, v63
    v_pk_mul_f32 v[62:63], v[62:63], v[70:71]
    v_cvt_pk_bf16_f32 v62, v62, v63
    v_min_u32 v62, -2, v62
    global_store_dword v59, v62, s[30:31] sc1
    """)
    stamp(10)
    a("s_branch L_out")
    a.vm = []
    a("L_D:\ns_barrier")
    for e in range(nex, 14): exdma(e)
    a(f"""
    v_lshl_add_u32 v55, v1, 3, s65
    s_add_u32 s52, s30, {HH}
    s_addc_u32 s53, s31, 0
    s_mov_b32 s54, 27648
    s_mov_b32 s55, 0x20000
    v_lshrrev_b32 v53, 4, v1
    v_bfe_u32 v54, v1, 3, 1
    v_and_b32 v56, 7, v1
    v_lshlrev_b32 v57, 9, v54
    v_lshl_add_u32 v57, v53, 7, v57
    v_lshl_add_u32 v57, v56, 4, v57
    s_mul_i32 s58, s3, 7168
    v_add_u32 v57, s58, v57
    v_add_u32 v58, 4096, v57
    v_lshlrev_b32 v59, 6, v52
    v_lshl_add_u32 v59, v53, 4, v59
    s_lshl_b32 s58, s3, 10
    v_add_u32 v59, s58, v59
    v_lshlrev_b32 v60, 3, v1
    v_lshrrev_b32 v61, 3, v1
    v_mul_u32_u24 v61, 1280, v61
    v_lshl_add_u32 v61, v56, 2, v61
    s_lshl_b32 s58, s61, 5
    v_add_u32 v61, s58, v61
    v_lshlrev_b32 v40, 1, v61
    v_add_u32 v40, {ACC}, v40
    s_mov_b32 s68, 0xff00ff00
    s_mov_b32 s69, 0xff00ff00
    """)
    for e in range(14):
        a.vmwait(f"E{e}")
        r = 96 + 4*e
        a(f"ds_read_b64_tr_b16 v[{r}:{r+1}], v55 offset:{e*ESTR}")
        a(f"ds_read_b64_tr_b16 v[{r+2}:{r+3}], v55 offset:{e*ESTR+512}")
    stamp(6)
    sigpoll()
    stamp(7)
    a("global_load_dwordx2 v[42:43], v40, s[30:31] sc1")
    l0, l1 = lab("dp"), lab("dd")
    a(f"s_mov_b32 s66, 0\n{l0}:")
    for p in range(7):
        a(f"buffer_load_dwordx4 v[{160+4*p}:{163+4*p}], v{57 + p//4}, s[52:55], 0 offen offset:{(p%4)*1024} sc1")
    a(f"s_add_u32 s66, s66, 1\ns_cmp_gt_u32 s66, {SPIN}\ns_cbranch_scc1 {l1}")
    for p in range(7):
        a(f"s_waitcnt vmcnt({6-p})")
        if p == 0: a("v_max3_u32 v56, v160, v161, v162\nv_max_u32 v56, v56, v163")
        else: a(f"v_max3_u32 v56, v56, v{160+4*p}, v{161+4*p}\nv_max3_u32 v56, v56, v{162+4*p}, v{163+4*p}")
    a(f"v_cmp_eq_u32 vcc, -1, v56\ns_cbranch_vccnz {l0}\n{l1}:\ns_waitcnt vmcnt(0) lgkmcnt(0)")
    stamp(8)
    for p in range(7):
        for y in range(2):
            r = 96 + 4 * (2*p + y)
            d = 20 + 4*y
            c = "0" if p == 0 else f"v[{d}:{d+3}]"
            a(f"v_mfma_f32_16x16x32_bf16 v[{d}:{d+3}], v[{r}:{r+3}], v[{160+4*p}:{163+4*p}], {c}")
    a("v_cvt_pk_bf16_f32 v42, v42, v43\nv_and_b32 v43, 0xffff0000, v42\nv_lshlrev_b32 v42, 16, v42")
    for r in range(4): a(f"v_cndmask_b32 v{20+r}, v{20+r}, v{24+r}, s[68:69]")
    a(f"ds_write_b128 v59, v[20:23] offset:{RP}")
    a("s_waitcnt lgkmcnt(0)\ns_barrier")
    stamp(9)
    a("s_cmp_lg_u32 s3, 0\ns_cbranch_scc1 L_out")
    for k in range(8): a(f"ds_read_b64 v[{62+2*k}:{63+2*k}], v60 offset:{RP + k*512}")
    a("""
    s_waitcnt lgkmcnt(0)
    v_pk_add_f32 v[62:63], v[62:63], v[64:65]
    v_pk_add_f32 v[66:67], v[66:67], v[68:69]
    v_pk_add_f32 v[70:71], v[70:71], v[72:73]
    v_pk_add_f32 v[74:75], v[74:75], v[76:77]
    v_pk_add_f32 v[62:63], v[62:63], v[66:67]
    v_pk_add_f32 v[70:71], v[70:71], v[74:75]
    v_pk_add_f32 v[62:63], v[62:63], v[70:71]
    v_cvt_pk_bf16_f32 v62, v62, v63
    v_and_b32 v63, 0xffff0000, v62
    v_lshlrev_b32 v62, 16, v62
    v_pk_add_f32 v[62:63], v[62:63], v[42:43]
    v_cvt_pk_bf16_f32 v62, v62, v63
    global_store_dword v61, v62, s[26:27]
    """)
    stamp(10)
    a("L_out:")
    if stamps:
        a("s_waitcnt vmcnt(0)")
        stamp(11)
        a(f"""
        s_getreg_b32 s94, hwreg(HW_REG_XCC_ID)
        s_mov_b32 s96, s60
        s_waitcnt lgkmcnt(0)
        s_lshl_b32 s58, s2, 2
        s_add_u32 s58, s58, s3
        s_lshl_b32 s58, s58, 6
        s_add_u32 s58, s58, {STAMP}
        v_mov_b32 v52, s58
        """)
        for i in range(14):
            a(f"v_mov_b32 v53, s{70+2*i}\nglobal_store_dword v52, v53, s[30:31] offset:{4*i}")
    a("L_end:\ns_endpgm")
    a.raw('.section .rodata,"a"')
    a.raw(".p2align 6")
    a.raw(f".amdhsa_kernel {NAME}_kernel")
    a.raw("  .amdhsa_next_free_vgpr 512\n  .amdhsa_next_free_sgpr 102\n  .amdhsa_accum_offset 256")
    a.raw("  .amdhsa_group_segment_fixed_size 0\n  .amdhsa_kernarg_size 96\n  .amdhsa_user_sgpr_count 2")
    a.raw("  .amdhsa_user_sgpr_kernarg_segment_ptr 1\n  .amdhsa_system_sgpr_workgroup_id_x 1")
    a.raw("  .amdhsa_float_denorm_mode_32 3")
    a.raw(".end_amdhsa_kernel")
    return a.text()

if __name__ == "__main__":
    out = sys.argv[1] if len(sys.argv) > 1 else "cdna_kernels/" + NAME + ".s"
    kw = eval("dict(" + (sys.argv[2] if len(sys.argv) > 2 else "") + ")")
    open(out, "w").write(gen(**kw))
```

```python
import sys
sys.path.insert(0, "gen")
from asmlib import Asm
NAME = "sequential_preLN__sliding_block_cached__glu_gated_glu__decode"
HEADER = open("cdna_kernels/" + NAME + ".s.ref").read().split("; Override launch")[0]

QP   = 0x000000
OS   = 0x080000
ACC  = 0x090000
HH   = 0x098000
SIG  = 0x0A0000
QC   = 0x0A8000
STAMP = 0x100000
XN   = 0
SM   = 10752
WQL  = 16384
EXL  = 36864
ESTR = 1088
WSTR = 20 * ESTR
LDS_BYTES = EXL + 4 * WSTR
XSTR = 1312
SPIN = 1 << 16

def gen(W=5, WR=6, stamps=False, nex=8, ex_at=72, ex_every=4, dbgdump=False, qk_at=64, poll_at=52, amp=None, W0=None, W0_until=0, WQK=None, qk_per=4, WE=None, WE_from=128, pv_per=4, early=False, x_at=8, wq_every=2, verbose=False, trace=False, touch=False):
    a = Asm()
    a.raw(HEADER.rstrip())
    a.raw(f"; @launch grid=(256,1,1) block=(256,1,1) lds={LDS_BYTES}")
    a.raw('.amdgcn_target "amdgcn-amd-amdhsa--gfx950"')
    a.raw(".text")
    a.raw(f".globl {NAME}_kernel")
    a.raw(".p2align 8")
    a.raw(f".type {NAME}_kernel,@function")
    a.raw(f"{NAME}_kernel:")
    nstamp = [0]
    def stamp(i, e=False):
        if stamps and (e == early or not (5 <= i <= 10)):
            a(f"s_memrealtime s[{70+2*i}:{71+2*i}]")
    uid = [0]
    def lab(p):
        uid[0] += 1
        return f"L_{p}{uid[0]}"
    a("s_load_dwordx4 s[8:11], s[0:1], 0")
    stamp(0)
    a(f"""
    s_load_dwordx4 s[12:15], s[0:1], 16
    s_load_dwordx16 s[16:31], s[0:1], 32
    s_cmp_ge_u32 s2, 256
    s_cbranch_scc1 L_end
    v_lshlrev_b32 v2, 4, v0
    s_lshl_b32 s7, s2, 20
    s_add_u32 s7, s7, 0xC0000
    s_mov_b32 s34, 0x40000
    s_mov_b32 s35, 0x20000
    s_waitcnt lgkmcnt(0)
    s_add_u32 s32, s10, s7
    s_addc_u32 s33, s11, 0
    """)
    def pro_a():
        if stamps:
            for i in range(1, 14):
                if i != 5: a(f"s_mov_b32 s{70+2*i}, 0")
        a(f"""
        s_add_u32 s36, s12, s7
        s_addc_u32 s37, s13, 0
        v_lshrrev_b32 v52, 6, v0
        v_and_b32 v1, 63, v0
        v_readfirstlane_b32 s3, v52
        s_lshr_b32 s4, s2, 5
        s_and_b32 s5, s2, 31
        v_lshrrev_b32 v52, 5, v0
        v_and_b32 v53, 31, v0
        v_mul_u32_u24 v37, 1280, v52
        v_lshl_add_u32 v37, v53, 3, v37
        s_lshr_b32 s56, s4, 1
        s_and_b32 s57, s4, 1
        s_mul_i32 s58, s56, 160
        s_mul_i32 s59, s3, 40
        s_add_u32 s58, s58, s59
        v_lshrrev_b32 v52, 3, v1
        v_add_u32 v52, s58, v52
        v_lshlrev_b32 v52, 13, v52
        v_and_b32 v53, 7, v1
        v_lshl_add_u32 v52, v53, 4, v52
        s_lshl_b32 s58, s5, 8
        s_lshl_b32 s59, s57, 7
        s_add_u32 s58, s58, s59
        v_add_u32 v36, s58, v52
        s_mul_i32 s7, s3, 5120
        s_add_u32 s7, s7, {WQL}
        s_mov_b32 s38, 0x40000
        s_mov_b32 s39, 0x20000
        s_mov_b32 s42, 5242880
        s_mov_b32 s43, 0x20000
        s_mov_b32 s40, s14
        s_mov_b32 s41, s15
        """)
    def qc_clear():
        l = lab("qc")
        a(f"""
        v_and_b32 v88, 31, v1
        v_lshlrev_b32 v88, 7, v88
        v_add_u32 v88, {QC}, v88
        v_mov_b32 v89, 0
        s_or_b32 s58, s2, s3
        s_cbranch_scc1 {l}
        """)
        a("global_store_dword v88, v89, s[30:31] sc1", track=False)
        a(f"{l}:")
    def qc_flag():
        l = lab("qf")
        a(f"""
        v_mov_b32 v86, 1
        s_or_b32 s58, s2, s3
        s_cbranch_scc1 {l}
        s_mov_b64 exec, 1
        """)
        a("global_store_dword v89, v86, s[28:29] sc1", track=False)
        a(f"s_mov_b64 exec, -1\n{l}:")
    def xloads():
        for j in range(5):
            a(f"global_load_dwordx2 v[{52+2*j}:{53+2*j}], v37, s[8:9] offset:{j*256}", tag="x")
    def wqdma(e):
        a(f"s_add_u32 m0, s7, {e*1024}")
        a(f"s_mov_b32 s58, {e*65536}")
        a(f"buffer_load_dwordx4 v36, s[40:43], s58 offen nt lds", tag="wq")

    def kreg(i):
        return f"v[{96+4*i}:{99+4*i}]" if i < 40 else f"a[{4*(i-40)}:{4*(i-40)+3}]"
    def vreg(i):
        return f"a[{96+4*i}:{99+4*i}]" if i < 40 else f"a[{4*(i-40)}:{4*(i-40)+3}]"
    Wmax = max(W, WR)
    qkr = [999, 999]
    def wins(n):
        w = W
        if W0 and n < W0_until: w = W0
        if WQK and qkr[0] <= n <= qkr[1]: w = WQK
        if WE and n >= WE_from: w = WE
        return w, w + (WR - W)
    def window(n):
        w, wr = wins(n)
        def cnt(k):
            big = [i for i, t in enumerate(a.vm) if t and (t[0] in "KVE" or t == "wq")]
            if len(big) < k: return None
            return len(a.vm) - 1 - big[-k]
        c2 = cnt(w); c1 = cnt(wr)
        if c1 is not None: a(f"s_waitcnt vmcnt({c1})")
        if w != wr and c2 is not None:
            l = lab("w")
            a.raw(f"    s_cbranch_vccnz {l}")
            a.raw(f"    s_waitcnt vmcnt({c2})")
            a.raw(f"{l}:")
    def issue(n):
        i = n % 64
        a(f"s_mov_b32 s6, {i*4096}")
        if n < 64: a(f"buffer_load_dwordx4 {kreg(i)}, v2, s[32:35], s6 offen nt", tag=f"K{i}")
        else:      a(f"buffer_load_dwordx4 {vreg(i)}, v2, s[36:39], s6 offen nt", tag=f"V{i}")
    n0 = W0 or W
    for n in range(n0):
        issue(n)
    stamp(5, True)
    pro_a()
    a(f"""
    s_and_b32 s58, s5, 7
    s_mul_i32 s58, s58, 12
    s_lshr_b32 s59, s5, 3
    s_mul_i32 s59, s59, 3
    s_add_u32 s58, s58, s59
    s_add_u32 s58, s58, s4
    s_sub_u32 s58, s58, 5
    s_sub_u32 s59, s58, 40
    s_cmp_lt_u32 s58, 40
    s_cselect_b32 s60, 2, 1
    s_cselect_b32 s61, s58, s59
    s_cmp_ge_u32 s58, 94
    s_cselect_b32 s60, 3, s60
    s_cmp_lt_u32 s4, 5
    s_cselect_b32 s60, 0, s60
    s_cselect_b32 s61, s4, s61
    s_cselect_b64 vcc, 0, -1
    """)
    lw, lf, ld, lj = lab("rw"), lab("rf"), lab("rd"), lab("rj")
    a(f"""
    s_mov_b32 s47, 0x20000
    s_mov_b32 s51, 0x20000
    s_mov_b32 s64, 0
    s_mul_i32 s65, s3, {WSTR}
    s_add_u32 s65, s65, {EXL}
    s_cmp_eq_u32 s60, 1
    s_cbranch_scc1 {lf}
    s_cmp_eq_u32 s60, 0
    s_cbranch_scc1 {lw}
    s_mov_b32 s44, s24
    s_mov_b32 s45, s25
    s_cmp_eq_u32 s60, 2
    s_cselect_b32 s46, 2211840, 0
    s_mov_b32 s48, s24
    s_mov_b32 s49, s25
    s_mov_b32 s50, s46
    s_mov_b32 s62, 40960
    s_mov_b32 s63, 40960
    s_mul_i32 s58, s3, 448
    v_lshrrev_b32 v62, 1, v1
    v_add_u32 v62, s58, v62
    v_mul_u32_u24 v62, 1280, v62
    v_and_b32 v63, 1, v1
    v_lshl_add_u32 v62, v63, 4, v62
    s_lshl_b32 s58, s61, 5
    v_add_u32 v3, s58, v62
    s_branch {lj}
    {lf}:
    s_mov_b32 s44, s20
    s_mov_b32 s45, s21
    s_mov_b32 s46, 2211840
    s_mov_b32 s48, s22
    s_mov_b32 s49, s23
    s_mov_b32 s50, 2211840
    s_mov_b32 s62, 0
    s_mov_b32 s63, 55296
    s_mul_i32 s58, s3, 160
    v_lshrrev_b32 v62, 2, v1
    v_add_u32 v62, s58, v62
    v_mul_u32_u24 v62, 3456, v62
    v_lshrrev_b32 v63, 4, v1
    v_and_b32 v63, 2, v63
    v_xor_b32 v63, v63, v1
    v_and_b32 v63, 3, v63
    v_lshl_add_u32 v62, v63, 4, v62
    s_lshl_b32 s58, s61, 6
    v_add_u32 v3, s58, v62
    s_branch {lj}
    {lw}:
    s_mov_b32 s44, s16
    s_mov_b32 s45, s17
    s_mov_b32 s46, 5242880
    s_mov_b32 s48, s16
    s_mov_b32 s49, s17
    s_mov_b32 s50, 5242880
    s_mov_b32 s62, 5120
    s_mov_b32 s63, 5120
    s_lshl_b32 s58, s5, 7
    s_lshl_b32 s59, s3, 5
    s_add_u32 s58, s58, s59
    v_lshrrev_b32 v63, 4, v1
    v_add_u32 v62, s58, v63
    v_mul_u32_u24 v62, 1280, v62
    v_lshlrev_b32 v63, 1, v63
    v_xor_b32 v63, v63, v1
    v_and_b32 v63, 15, v63
    v_lshl_add_u32 v62, v63, 4, v62
    s_lshl_b32 s58, s61, 8
    v_add_u32 v3, s58, v62
    {lj}:
    """)
    def exdma(e):
        srd = "s[44:47]" if e % 2 == 0 else "s[48:51]"
        a(f"s_add_u32 m0, s65, {e*ESTR}")
        a(f"buffer_load_dwordx4 v3, {srd}, s64 offen nt lds", tag=f"E{e}")
        a(f"s_add_u32 s64, s64, s{62 + e % 2}")
    if touch:
        a("v_mov_b32 v62, 0\ns_mov_b64 exec, 1")
        a("buffer_load_dword v63, v2, s[36:39], 0 offen", tag="t")
        a("global_load_dword v63, v62, s[8:9]", tag="t")
        a("buffer_load_dword v63, v36, s[40:43], 0 offen", tag="t")
        a("global_load_dword v63, v62, s[30:31]", tag="t")
        a("global_load_dword v63, v62, s[28:29] offset:128", tag="t")
        a("global_load_dword v63, v62, s[26:27]", tag="t")
        a("buffer_load_dword v63, v3, s[44:47], 0 offen", tag="t")
        a("buffer_load_dword v63, v3, s[48:51], 0 offen", tag="t")
        a("s_mov_b64 exec, -1")
    a("""
    v_and_b32 v64, 1, v1
    v_mov_b32 v65, 0xffff
    v_lshlrev_b32 v64, 4, v64
    v_lshlrev_b32 v64, v64, v65
    v_bfe_u32 v65, v1, 1, 2
    """)
    for r in range(4):
        a(f"v_cmp_eq_u32 s[58:59], {r}, v65")
        a(f"v_cndmask_b32 v{4+r}, 0, v64, s[58:59]")
    l1, l2, l3 = lab("c"), lab("c"), lab("c")
    def clears():
      a(f"""
    s_lshl_b32 s58, s5, 3
    s_add_u32 s58, s58, s4
    s_lshl_b32 s58, s58, 8
    s_add_u32 s58, s58, {OS}
    v_lshl_add_u32 v93, v1, 2, s58
    v_mov_b32 v86, -1
    s_cmp_lg_u32 s3, 0
    s_cbranch_scc1 {l1}
    """)
      a("global_store_dword v93, v86, s[30:31] sc1", track=False)
      a(f"""
    {l1}:
    s_lshl_b32 s58, s61, 9
    s_add_u32 s58, s58, {HH}
    v_lshl_add_u32 v87, v0, 2, s58
    s_cmp_lg_u32 s60, 1
    s_cbranch_scc1 {l2}
    s_cmp_gt_u32 s3, 1
    s_cbranch_scc1 {l2}
    """)
      a("global_store_dword v87, v86, s[30:31] sc1", track=False)
      a(f"""
    {l2}:
    s_lshl_b32 s58, s2, 10
    s_add_u32 s58, s58, {SIG}
    v_lshl_add_u32 v87, v0, 2, s58
    v_mov_b32 v86, 0
    s_cmp_ge_u32 s2, 16
    s_cbranch_scc1 {l3}
    """)
      a("global_store_dword v87, v86, s[30:31] sc1", track=False)
      a(f"{l3}:")

    F = list(range(62, 82))
    def red32(r, t, op="v_add_f32"):
        o = []
        for k in (8, 4, 2, 1):
            o.append(f"{op}_dpp v{r}, v{r}, v{r} row_ror:{k} row_mask:0xf bank_mask:0xf")
        o += [f"v_mov_b32 v{t}, v{r}", f"v_permlane16_swap_b32 v{r}, v{t}", f"{op} v{r}, v{r}, v{t}"]
        return o
    def rbf(r):
        return [f"v_cvt_pk_bf16_f32 v{r}, v{r}, v{r}", f"v_lshlrev_b32 v{r}, 16, v{r}"]
    chunks = {}
    def at(n, f): chunks.setdefault(n, []).append(f)

    def ln1_a():
        stamp(6, True)
        a.vmwait("x")
        stamp(7, True)
        for j in range(5):
            for t in range(2):
                a(f"v_lshlrev_b32 v{F[4*j+2*t]}, 16, v{52+2*j+t}")
                a(f"v_and_b32 v{F[4*j+2*t+1]}, 0xffff0000, v{52+2*j+t}")
        l = lab("ai")
        a(f"""
        v_lshl_add_u32 v92, v37, 1, 0
        v_add_u32 v92, {ACC}, v92
        s_cmp_lg_u32 s2, 0
        s_cbranch_scc1 {l}
        """)
        for j in range(5):
            a(f"global_store_dwordx4 v92, v[{F[4*j]}:{F[4*j+3]}], s[30:31] offset:{j*512} sc1", track=False)
        a(f"{l}:")
    def ln1_a2():
        a(f"v_pk_add_f32 v[82:83], v[{F[0]}:{F[1]}], v[{F[2]}:{F[3]}]")
        for k in range(2, 10):
            a(f"v_pk_add_f32 v[82:83], v[82:83], v[{F[2*k]}:{F[2*k+1]}]")
        a("v_add_f32 v82, v82, v83")
        a("\n".join(red32(82, 83)))
        a("v_mul_f32 v82, 0x3acccccd, v82")
    def ln1_b():
        a("v_mov_b32 v84, 0\nv_mov_b32 v85, 0\nv_mov_b32 v83, v82")
        for k in range(10):
            a(f"v_pk_add_f32 v[86:87], v[{F[2*k]}:{F[2*k+1]}], v[82:83] neg_lo:[0,1] neg_hi:[0,1]")
            a(f"v_pk_fma_f32 v[84:85], v[86:87], v[86:87], v[84:85]")
    def ln1_b2():
        a("v_add_f32 v84, v84, v85")
        a("\n".join(red32(84, 85)))
        a("v_mul_f32 v84, 0x3acccccd, v84")
        a("\n".join(rbf(84)))
        a("v_add_f32 v84, 0x3727c5ac, v84")
        a("\n".join(rbf(84)))
        a("v_sqrt_f32 v84, v84")
        a("\n".join(rbf(84)))
        a("v_rcp_f32 v84, v84")
        a("\n".join(rbf(82)))
        a("v_mov_b32 v83, v82\nv_mov_b32 v85, v84")
    def ln1_c(js):
        def f():
            for j in js:
                for t in range(2):
                    k = 2 * j + t
                    x0, x1 = F[2*k], F[2*k+1]
                    a(f"v_pk_add_f32 v[{x0}:{x1}], v[{x0}:{x1}], v[82:83] neg_lo:[0,1] neg_hi:[0,1]")
                    a(f"v_cvt_pk_bf16_f32 v86, v{x0}, v{x1}")
                    a(f"v_lshlrev_b32 v{x0}, 16, v86")
                    a(f"v_and_b32 v{x1}, 0xffff0000, v86")
                    a(f"v_pk_mul_f32 v[{x0}:{x1}], v[{x0}:{x1}], v[84:85]")
                    a(f"v_cvt_pk_bf16_f32 v{52+k}, v{x0}, v{x1}")
                a(f"ds_write_b64 v91, v[{52+2*j}:{53+2*j}] offset:{XN + j*256}")
        return f
    def ln1_pre():
        a(f"""
        v_lshrrev_b32 v90, 5, v0
        v_mul_u32_u24 v91, {XSTR}, v90
        v_and_b32 v90, 31, v0
        v_lshl_add_u32 v91, v90, 3, v91
        """)
    def qgemm_0():
        a(f"""
        v_lshrrev_b32 v54, 4, v1
        v_bfe_u32 v55, v1, 2, 2
        v_lshl_add_u32 v55, v54, 3, v55
        v_lshlrev_b32 v52, 7, v55
        v_and_b32 v55, 3, v1
        v_lshl_add_u32 v52, v55, 3, v52
        s_lshl_b32 s58, s3, 5
        s_add_u32 s58, s58, {WQL}
        v_add_u32 v52, s58, v52
        v_and_b32 v55, 7, v1
        v_mul_u32_u24 v90, {XSTR}, v55
        v_lshl_add_u32 v90, v54, 4, v90
        s_mul_i32 s58, s56, 320
        v_add_u32 v53, s58, v90
        """)
    def qgemm_a():
        a.vmwait("wq", "lgkmcnt(0)")
        a("s_barrier")
        stamp(8, True)
        for s in range(5):
            a(f"ds_read_b64_tr_b16 v[{12+4*s}:{13+4*s}], v52 offset:{s*4096}")
            a(f"ds_read_b64_tr_b16 v[{14+4*s}:{15+4*s}], v52 offset:{s*4096+512}")
            a(f"ds_read_b128 v[{32+4*s}:{35+4*s}], v53 offset:{XN + s*64}")
        a(f"""
        v_lshlrev_b32 v55, 11, v55
        v_lshl_add_u32 v54, v54, 4, v55
        s_lshl_b32 s58, s5, 14
        s_lshl_b32 s59, s4, 8
        s_add_u32 s58, s58, s59
        s_lshl_b32 s59, s3, 6
        s_add_u32 s58, s58, s59
        s_add_u32 s58, s58, {QP}
        v_add_u32 v54, s58, v54
        """)
    def qgemm_b():
        a("s_waitcnt lgkmcnt(0)")
        for s in range(5):
            c = "0" if s == 0 else "v[56:59]"
            a(f"v_mfma_f32_16x16x32_bf16 v[56:59], v[{12+4*s}:{15+4*s}], v[{32+4*s}:{35+4*s}], {c}")
        l = lab("fl")
        a(f"s_cmp_lg_u32 s3, 0\ns_cbranch_scc1 {l}")
        a("global_load_dword v60, v89, s[28:29] sc1", track=False)
        a(f"{l}:")
        a("s_mov_b32 exec_lo, 0x00ff00ff\ns_mov_b32 exec_hi, 0x00ff00ff\ns_nop 3")
        a("global_store_dwordx4 v54, v[56:59], s[30:31] sc1", tag="qst")
        a("s_mov_b64 exec, -1")
        stamp(9, True)
    def qsignal():
        a.vmwait("qst")
        a("s_barrier")
        l, l0, l1 = lab("qs"), lab("qs"), lab("qs")
        a(f"""
        s_lshl_b32 s58, s5, 7
        s_add_u32 s58, s58, {QC}
        v_mov_b32 v52, s58
        v_mov_b32 v53, 1
        s_cmp_lg_u32 s3, 0
        s_cbranch_scc1 {l}
        s_mov_b64 exec, 1
        s_mov_b32 s57, 0
        {l0}:
        v_readfirstlane_b32 s58, v60
        s_cmp_lg_u32 s58, 0
        s_cbranch_scc1 {l1}
        s_add_u32 s57, s57, 1
        s_cmp_gt_u32 s57, {SPIN}
        s_cbranch_scc1 {l1}
        s_sleep 4
        """)
        a("global_load_dword v60, v89, s[28:29] sc1", track=False)
        a.raw("    s_waitcnt vmcnt(0)")
        a(f"s_branch {l0}\n{l1}:")
        a("global_atomic_add v52, v53, s[30:31]", track=False)
        a(f"s_mov_b64 exec, -1\n{l}:")
        stamp(1)
    def qpoll_a():
        a("global_load_dword v53, v52, s[30:31] sc1", tag="poll")
    def gpoll_a():
        a("v_mov_b32 v52, v88")
        a("global_load_dword v53, v52, s[30:31] sc1", tag="poll")
    def pollchk(allh):
        a.vmwait("poll")
        l0, l1 = lab("pl"), lab("pd")
        chk = "s_cmp_eq_u32 s58, 0"
        a(f"""
        s_mov_b32 s57, 0
        {l0}:
        v_cmp_gt_u32 s[58:59], 8, v53
        {chk}
        s_cbranch_scc1 {l1}
        s_add_u32 s57, s57, 1
        s_cmp_gt_u32 s57, {SPIN}
        s_cbranch_scc1 {l1}
        s_sleep 8
        """)
        a("global_load_dword v53, v52, s[30:31] sc1", track=False)
        a.raw("    s_waitcnt vmcnt(0)")
        a(f"s_branch {l0}\n{l1}:")
    def qpoll_b():
        pollchk(False)
        stamp(2)
        a(f"""
        v_lshrrev_b32 v52, 4, v1
        v_lshlrev_b32 v52, 9, v52
        v_and_b32 v53, 15, v1
        v_lshl_add_u32 v52, v53, 5, v52
        s_lshl_b32 s58, s5, 14
        s_lshl_b32 s59, s4, 11
        s_add_u32 s58, s58, s59
        s_add_u32 s58, s58, {QP}
        v_add_u32 v52, s58, v52
        """)
        a("global_load_dwordx4 v[56:59], v52, s[30:31] sc1", tag="qg")
        a("global_load_dwordx4 v[60:63], v52, s[30:31] offset:16 sc1", tag="qg")
    def qfin0(sw):
        a.vmwait("qg")
        for r in range(8): a(f"v_mov_b32 v{64+r}, v{56+r}")
        for r in range(8): a(f"{sw} v{56+r}, v{64+r}")
        for r in range(8): a(f"v_add_f32 v{56+r}, v{56+r}, v{64+r}")
    def qfin():
        qfin0("v_permlane16_swap_b32")
        for r in range(4): a(f"v_cvt_pk_bf16_f32 v{8+r}, v{56+2*r}, v{57+2*r}")
        a("s_mov_b32 s66, 0xaaaaaaaa\ns_mov_b32 s67, 0xaaaaaaaa\ns_mov_b32 s68, 0xcccccccc\ns_mov_b32 s69, 0xcccccccc")
    P = list(range(36, 52))
    def qk(i0, cnt):
        def f():
            a.vmwait(f"K{i0+cnt-1}")
            srcs = []
            for i in range(i0, i0 + cnt):
                t = i % 16
                if i < 40:
                    src = [96 + 4*i + r for r in range(4)]
                else:
                    base = 28 + 4 * (i % 2)
                    src = [base + r for r in range(4)]
                    for r in range(4): a(f"v_accvgpr_read_b32 v{base+r}, a{4*(i-40)+r}")
                srcs.append((t, src))
                a(f"v_mov_b32 v{P[t]}, 0")
                if len(srcs) == 2:
                    for r in range(4):
                        for (t2, s2) in srcs: a(f"v_dot2c_f32_bf16 v{P[t2]}, v{s2[r]}, v{8+r}")
                    srcs.clear()
        return f
    def qkred(m):
        def f():
            if True:
                for t in range(8):
                    a(f"v_add_f32_dpp v{P[t]}, v{P[t]}, v{P[t]} row_ror:8 row_mask:0xf bank_mask:0x3")
                for t in range(8):
                    a(f"v_add_f32_dpp v{P[t]}, v{P[t+8]}, v{P[t+8]} row_ror:8 row_mask:0xf bank_mask:0xc")
                for t in range(4):
                    a(f"v_add_f32_dpp v{P[t]}, v{P[t]}, v{P[t]} row_ror:12 row_mask:0xf bank_mask:0x5")
                for t in range(4):
                    a(f"v_add_f32_dpp v{P[t]}, v{P[t+4]}, v{P[t+4]} row_ror:4 row_mask:0xf bank_mask:0xa")
                for t in range(4):
                    a(f"v_add_f32_dpp v{P[t]}, v{P[t]}, v{P[t]} quad_perm:[1,0,3,2] row_mask:0xf bank_mask:0xf")
                for t in range(4):
                    a(f"v_add_f32_dpp v{P[t]}, v{P[t]}, v{P[t]} quad_perm:[2,3,0,1] row_mask:0xf bank_mask:0xf")
                a(f"v_cndmask_b32 v{P[0]}, v{P[0]}, v{P[1]}, s[66:67]")
                a(f"v_cndmask_b32 v{P[2]}, v{P[2]}, v{P[3]}, s[66:67]")
                a(f"v_cndmask_b32 v{12+m}, v{P[0]}, v{P[2]}, s[68:69]")
        return f
    def red64(r, t, op):
        o = red32(r, t, op)
        o += [f"v_mov_b32 v{t}, v{r}", f"v_permlane32_swap_b32 v{r}, v{t}", f"{op} v{r}, v{r}, v{t}"]
        return o
    def softmax_a():
        a("v_cvt_pk_bf16_f32 v52, v12, v13\nv_cvt_pk_bf16_f32 v53, v14, v15")
        a("v_lshlrev_b32 v12, 16, v52\nv_and_b32 v13, 0xffff0000, v52\nv_lshlrev_b32 v14, 16, v53\nv_and_b32 v15, 0xffff0000, v53")
        for m in range(4): a(f"v_mul_f32 v{12+m}, 0x3db504f3, v{12+m}")
        a("v_cvt_pk_bf16_f32 v52, v12, v13\nv_cvt_pk_bf16_f32 v53, v14, v15")
        a("v_lshlrev_b32 v12, 16, v52\nv_and_b32 v13, 0xffff0000, v52\nv_lshlrev_b32 v14, 16, v53\nv_and_b32 v15, 0xffff0000, v53")
        if dbgdump:
            a(f"s_lshl_b32 s58, s2, 12\ns_lshl_b32 s59, s3, 10\ns_add_u32 s58, s58, s59\ns_add_u32 s58, s58, 0x200000\nv_lshl_add_u32 v54, v1, 2, s58")
            for m in range(4): a(f"global_store_dword v54, v{12+m}, s[30:31] offset:{m*256}", track=False)
        a("v_max_f32 v52, v12, v13\nv_max3_f32 v52, v52, v14, v15")
        a("\n".join(red64(52, 53, "v_max_f32")))
        for m in range(4): a(f"v_sub_f32 v{12+m}, v{12+m}, v52")
        for m in range(4): a(f"v_mul_f32 v{12+m}, 0x3fb8aa3b, v{12+m}")
        for m in range(4): a(f"v_exp_f32 v{12+m}, v{12+m}")
        a("v_add_f32 v53, v12, v13\nv_add_f32 v54, v14, v15\nv_add_f32 v53, v53, v54")
        a("\n".join(red64(53, 54, "v_add_f32")))
        a(f"s_lshl_b32 s58, s3, 3\nv_mov_b32 v54, s58\nds_write_b64 v54, v[52:53] offset:{SM}")
    def softmax_b():
        a("s_waitcnt lgkmcnt(0)\ns_barrier\nv_mov_b32 v54, 0")
        a(f"ds_read_b128 v[56:59], v54 offset:{SM}\nds_read_b128 v[60:63], v54 offset:{SM+16}")
        a("s_waitcnt lgkmcnt(0)")
        a("v_max_f32 v54, v56, v58\nv_max3_f32 v54, v54, v60, v62")
        for r in (56, 58, 60, 62, 52): a(f"v_sub_f32 v{r}, v{r}, v54")
        for r in (56, 58, 60, 62, 52): a(f"v_mul_f32 v{r}, 0x3fb8aa3b, v{r}")
        for r in (56, 58, 60, 62, 52): a(f"v_exp_f32 v{r}, v{r}")
        a("v_mul_f32 v54, v56, v57\nv_fmac_f32 v54, v58, v59\nv_fmac_f32 v54, v60, v61\nv_fmac_f32 v54, v62, v63")
        a("v_rcp_f32 v54, v54\nv_mul_f32 v52, v52, v54")
        for m in range(4): a(f"v_mul_f32 v{12+m}, v{12+m}, v52")
        for m in range(4): a(f"v_cvt_pk_bf16_f32 v{12+m}, v{12+m}, v{12+m}")
        build(0)
        stamp(3)
    def build(i):
        b = 20 + 4 * (i % 2)
        for r in range(4):
            a(f"v_and_b32_dpp v{b+r}, v{12 + i//16}, v{4+r} row_newbcast:{i%16} row_mask:0xf bank_mask:0xf")
    def pv(i):
        if i + 1 < 64: build(i + 1)
        a.vmwait(f"V{i}")
        b = 20 + 4 * (i % 2)
        c = "0" if i == 0 else "v[16:19]"
        a(f"v_mfma_f32_16x16x32_bf16 v[16:19], v[{b}:{b+3}], {vreg(i)}, {c}")

    xa = max(x_at, n0)
    wqs = [xa + 1 + wq_every * e for e in range(5)]
    Q = [(xa, None, lambda: (qc_clear(), xloads(), ln1_pre())), (0, "x", lambda: (qc_flag(), ln1_a()))]
    Q += [(0, None, f) for f in (ln1_a2, ln1_b, ln1_b2, ln1_c([0]), ln1_c([1, 2]), ln1_c([3, 4]), clears, qgemm_0)]
    Q += [(wqs[-1] + 1, "wq", qgemm_a), (0, None, qgemm_b), (0, "qst", qsignal)]
    Q += [(poll_at, None, qpoll_a), (0, "poll", qpoll_b), (0, "qg", lambda: qfin0("v_permlane32_swap_b32")), (0, None, qfin)]
    kdone = [0]
    def mkqk(i):
        f = qk(i, qk_per)
        def g():
            if i == 0: qkr[0] = cur[0]
            f(); kdone[0] = i + qk_per
        return g
    for i in range(0, 64, qk_per):
        Q.append((max(qk_at, i + qk_per), f"K{i+qk_per-1}", mkqk(i)))
        if (i + qk_per) % 16 == 0: Q.append((0, None, qkred((i + qk_per) // 16 - 1)))
    smb = [999]
    def smb_f():
        softmax_b(); smb[0] = cur[0]; qkr[1] = cur[0] + 1
    Q += [(0, None, softmax_a), (0, None, smb_f), (0, None, gpoll_a), (0, "poll", lambda: pollchk(True))]
    pvdone = [0]
    exi = 0
    cur = [0]
    log = []
    for n in range(n0, 128):
        cur[0] = n
        window(n)
        if trace:
            if n > n0:
                a("s_waitcnt lgkmcnt(0)")
                a(f"v_writelane_b32 v{94 + (n-1)//64}, s98, {(n-1)%64}")
            a("s_memrealtime s[98:99]")
        assert n < 104 or kdone[0] > n - 64
        issue(n)
        if n in wqs:
            window(n); wqdma(wqs.index(n))
        if n >= ex_at and (n - ex_at) % ex_every == 0 and exi < nex:
            window(n); exdma(exi); exi += 1
        if Q and Q[0][0] <= n and (Q[0][1] is None or Q[0][1] not in a.vm):
            f = Q.pop(0)[2]; f(); log.append((n, getattr(f, "__name__", "?")))
        if n == 30: stamp(10, True)
        if n > smb[0]:
            c = 0
            while pvdone[0] <= n - 64 and f"V{pvdone[0]}" not in a.vm and c < pv_per:
                pv(pvdone[0]); pvdone[0] += 1; c += 1
    assert not Q
    if verbose: print(log, "pv backlog", 64 - pvdone[0])
    assert exi == nex
    if trace:
        a(f"""
        s_lshl_b32 s58, s2, 11
        s_lshl_b32 s59, s3, 9
        s_add_u32 s58, s58, s59
        s_add_u32 s58, s58, 0x300000
        v_lshl_add_u32 v52, v1, 2, s58
        """)
        a("global_store_dword v52, v94, s[30:31]", track=False)
        a("global_store_dword v52, v95, s[30:31] offset:256", track=False)
    a(f"""
    v_and_b32 v52, 15, v1
    v_bfe_u32 v53, v1, 4, 1
    v_lshlrev_b32 v54, 5, v52
    v_lshl_add_u32 v54, v53, 4, v54
    s_lshl_b32 s58, s3, 9
    v_add_u32 v54, s58, v54
    v_lshlrev_b32 v55, 3, v1
    """)
    while pvdone[0] < 64:
        pv(pvdone[0]); pvdone[0] += 1
    stamp(4)
    OP = SM + 64
    a(f"ds_write_b128 v54, v[16:19] offset:{OP}")
    a("s_waitcnt vmcnt(0) lgkmcnt(0)\ns_barrier")
    lp = lab("pub")
    a(f"s_cmp_lg_u32 s3, 0\ns_cbranch_scc1 {lp}")
    for w in range(4): a(f"ds_read_b64 v[{56+2*w}:{57+2*w}], v55 offset:{OP + w*512}")
    a("""
    s_waitcnt lgkmcnt(0)
    v_pk_add_f32 v[56:57], v[56:57], v[58:59]
    v_pk_add_f32 v[60:61], v[60:61], v[62:63]
    v_pk_add_f32 v[56:57], v[56:57], v[60:61]
    v_cvt_pk_bf16_f32 v56, v56, v57
    v_min_u32 v56, -2, v56
    """)
    a("global_store_dword v93, v56, s[30:31] sc1", track=False)
    a(f"{lp}:")
    stamp(5)
    a("s_cmp_eq_u32 s60, 1\ns_cbranch_scc1 L_F\ns_cmp_eq_u32 s60, 2\ns_cbranch_scc1 L_D\ns_cmp_eq_u32 s60, 3\ns_cbranch_scc1 L_out")
    a(f"""
    v_lshrrev_b32 v53, 4, v1
    v_and_b32 v54, 7, v1
    v_lshlrev_b32 v54, 8, v54
    v_lshl_add_u32 v54, v53, 4, v54
    s_lshl_b32 s58, s5, 11
    s_add_u32 s58, s58, {OS}
    v_add_u32 v54, s58, v54
    """)
    def oloads():
        for s in range(4): a(f"global_load_dwordx4 v[{64+4*s}:{67+4*s}], v54, s[30:31] offset:{s*64} sc1")
    oloads()
    a(f"""
    v_mul_u32_u24 v55, {2*ESTR}, v53
    v_bfe_u32 v56, v1, 2, 2
    v_lshl_add_u32 v55, v56, 8, v55
    v_and_b32 v57, 3, v1
    v_lshl_add_u32 v55, v57, 3, v55
    v_add_u32 v55, {EXL}, v55
    s_lshl_b32 s58, s3, 1
    v_xor_b32 v57, s58, v56
    v_lshl_add_u32 v58, v57, 5, v55
    v_xor_b32 v57, 1, v57
    v_lshl_add_u32 v59, v57, 5, v55
    v_add_u32 v60, {ESTR}, v58
    v_add_u32 v61, {ESTR}, v59
    """)
    for tn in range(2):
        for s in range(4):
            r = 96 + tn*16 + s*4
            a(f"ds_read_b64_tr_b16 v[{r}:{r+1}], v{58+tn} offset:{s*WSTR}")
            a(f"ds_read_b64_tr_b16 v[{r+2}:{r+3}], v{60+tn} offset:{s*WSTR}")
    a(f"""
    v_and_b32 v56, 1, v53
    v_mul_u32_u24 v56, 10240, v56
    v_lshrrev_b32 v57, 5, v1
    v_lshl_add_u32 v57, v57, 4, v52
    v_lshl_add_u32 v56, v57, 2, v56
    s_lshl_b32 s58, s61, 9
    s_lshl_b32 s59, s3, 7
    s_add_u32 s58, s58, s59
    s_add_u32 s58, s58, {ACC}
    v_add_u32 v62, s58, v56
    v_add_u32 v63, 5120, v62
    s_mul_i32 s58, s5, 5
    s_add_u32 s58, s58, s4
    s_and_b32 s58, s58, 15
    s_lshl_b32 s58, s58, 7
    s_add_u32 s58, s58, {SIG}
    v_lshlrev_b32 v88, 11, v1
    v_add_u32 v88, s58, v88
    v_mov_b32 v89, 1
    s_mov_b32 s66, 0
    s_mov_b32 s68, 0
    s_mov_b32 s69, -1
    """)
    l0, l1 = lab("wp"), lab("wd")
    a(f"{l0}:\ns_waitcnt vmcnt(0)")
    a("v_max3_u32 v56, v64, v65, v66")
    for r in range(67, 79, 2): a(f"v_max3_u32 v56, v56, v{r}, v{r+1}")
    a("v_max_u32 v56, v56, v79")
    a(f"""
    v_cmp_eq_u32 vcc, -1, v56
    s_cbranch_vccz {l1}
    s_add_u32 s66, s66, 1
    s_cmp_gt_u32 s66, {SPIN}
    s_cbranch_scc1 {l1}
    """)
    oloads()
    a(f"s_branch {l0}\n{l1}:")
    stamp(6)
    a("s_waitcnt lgkmcnt(0)")
    for s in range(4):
        for tn in range(2):
            r = 96 + tn*16 + s*4
            c = "0" if s == 0 else f"v[{80+4*tn}:{83+4*tn}]"
            a(f"v_mfma_f32_16x16x32_bf16 v[{80+4*tn}:{83+4*tn}], v[{64+4*s}:{67+4*s}], v[{r}:{r+3}], {c}")
    for r in range(4): a(f"v_cndmask_b32 v{80+r}, v{80+r}, v{84+r}, s[68:69]")
    for r in range(4): a(f"global_atomic_add_f32 v{62 + r//2}, v{80+r}, s[30:31] offset:{(r%2)*2560}")
    a("s_waitcnt vmcnt(0)\ns_barrier")
    stamp(7)
    a("s_cmp_lg_u32 s3, 0\ns_cbranch_scc1 L_out\ns_mov_b64 exec, 0xff")
    a("global_atomic_add v88, v89, s[30:31]")
    a("s_mov_b64 exec, -1\ns_branch L_out")

    def sigpoll():
        l0, l1 = lab("sp"), lab("sd")
        a(f"""
        s_and_b32 s58, s2, 7
        s_lshl_b32 s58, s58, 11
        s_add_u32 s58, s58, {SIG}
        v_lshl_add_u32 v88, v52, 7, s58
        s_mov_b32 s66, 0
        s_cmp_lg_u32 s3, 0
        s_cbranch_scc1 {l1}
        s_mov_b64 exec, 0xffff
        {l0}:
        global_load_dword v89, v88, s[30:31] sc1
        s_add_u32 s66, s66, 1
        s_cmp_gt_u32 s66, {SPIN}
        s_cbranch_scc1 {l1}
        s_waitcnt vmcnt(0)
        v_cmp_ne_u32 vcc, 10, v89
        s_cbranch_vccnz {l0}
        {l1}:
        s_mov_b64 exec, -1
        s_barrier
        """)
    a.vm = []
    a("L_F:\ns_barrier")
    for e in range(nex, 20): exdma(e)
    a(f"""
    v_lshrrev_b32 v53, 4, v1
    v_lshrrev_b32 v54, 5, v1
    v_mul_u32_u24 v55, {2*ESTR}, v54
    v_and_b32 v54, 1, v53
    v_bfe_u32 v56, v1, 2, 2
    v_lshl_add_u32 v56, v54, 3, v56
    v_lshl_add_u32 v55, v56, 6, v55
    v_and_b32 v56, 3, v1
    v_lshl_add_u32 v55, v56, 3, v55
    v_add_u32 v55, s65, v55
    v_xor_b32 v56, 1, v54
    v_lshl_add_u32 v56, v56, 5, v55
    v_lshl_add_u32 v55, v54, 5, v55
    s_mul_i32 s58, s3, 320
    v_add_u32 v90, s58, v90
    """)
    for s in range(5):
        a.vmwait(f"E{4*s+3}")
        for mu in range(2):
            for n in range(2):
                r = 96 + ((s*2 + mu)*2 + n) * 4
                off = (4*s + mu) * ESTR
                a(f"ds_read_b64_tr_b16 v[{r}:{r+1}], v{55+n} offset:{off}")
                a(f"ds_read_b64_tr_b16 v[{r+2}:{r+3}], v{55+n} offset:{off+256}")
    RP = WQL
    a(f"""
    v_and_b32 v57, 7, v1
    v_lshlrev_b32 v57, 7, v57
    v_bfe_u32 v58, v1, 3, 1
    v_lshl_add_u32 v57, v58, 10, v57
    v_lshl_add_u32 v57, v53, 4, v57
    s_lshl_b32 s58, s3, 11
    v_add_u32 v57, s58, v57
    v_lshlrev_b32 v58, 3, v0
    v_lshrrev_b32 v59, 4, v0
    v_lshlrev_b32 v59, 4, v59
    v_bfe_u32 v60, v0, 1, 2
    v_lshl_add_u32 v59, v60, 7, v59
    v_bfe_u32 v60, v0, 3, 1
    v_lshl_add_u32 v59, v60, 3, v59
    v_and_b32 v60, 1, v0
    v_lshl_add_u32 v59, v60, 2, v59
    s_lshl_b32 s58, s61, 9
    s_add_u32 s58, s58, {HH}
    v_add_u32 v59, s58, v59
    s_mov_b32 s68, 0xff00ff00
    s_mov_b32 s69, 0xff00ff00
    """)
    stamp(6)
    sigpoll()
    stamp(7)
    for j in range(5): a(f"global_load_dwordx4 v[{F[4*j]}:{F[4*j+3]}], v92, s[30:31] offset:{j*512} sc1", tag=f"h{j}")
    a.vmwait("h0")
    a(f"v_pk_add_f32 v[82:83], v[{F[0]}:{F[1]}], v[{F[2]}:{F[3]}]")
    for k in range(2, 10):
        if k % 2 == 0: a.vmwait(f"h{k//2}")
        a(f"v_pk_add_f32 v[82:83], v[82:83], v[{F[2*k]}:{F[2*k+1]}]")
    stamp(8)
    a("v_add_f32 v82, v82, v83")
    a("\n".join(red32(82, 83)))
    a("v_mul_f32 v82, 0x3acccccd, v82\nv_mov_b32 v83, v82")
    for k in range(10):
        a(f"v_pk_add_f32 v[{F[2*k]}:{F[2*k+1]}], v[{F[2*k]}:{F[2*k+1]}], v[82:83] neg_lo:[0,1] neg_hi:[0,1]")
    a(f"v_pk_mul_f32 v[84:85], v[{F[0]}:{F[1]}], v[{F[0]}:{F[1]}]")
    for k in range(1, 10):
        a(f"v_pk_fma_f32 v[84:85], v[{F[2*k]}:{F[2*k+1]}], v[{F[2*k]}:{F[2*k+1]}], v[84:85]")
    a("v_add_f32 v84, v84, v85")
    a("\n".join(red32(84, 85)))
    a("v_mov_b32 v85, 0x3727c5ac\nv_fmac_f32 v85, 0x3acccccd, v84\nv_rsq_f32 v84, v85\nv_mov_b32 v85, v84")
    for j in range(5):
        for t in range(2):
            k = 2*j + t
            a(f"v_pk_mul_f32 v[{F[2*k]}:{F[2*k+1]}], v[{F[2*k]}:{F[2*k+1]}], v[84:85]")
        for t in range(2):
            k = 2*j + t
            a(f"v_cvt_pk_bf16_f32 v{40+k}, v{F[2*k]}, v{F[2*k+1]}")
        a(f"ds_write_b64 v91, v[{40+2*j}:{41+2*j}] offset:{XN + j*256}")
    a("s_waitcnt lgkmcnt(0)\ns_barrier")
    for s in range(5): a(f"ds_read_b128 v[{62+4*s}:{65+4*s}], v90 offset:{XN + s*64}")
    for s in range(5):
        a(f"s_waitcnt lgkmcnt({4-s})")
        for mu in range(2):
            for n in range(2):
                r = 96 + ((s*2 + mu)*2 + n) * 4
                d = 20 + (mu*2 + n) * 4
                c = "0" if s == 0 else f"v[{d}:{d+3}]"
                a(f"v_mfma_f32_16x16x32_bf16 v[{d}:{d+3}], v[{r}:{r+3}], v[{62+4*s}:{65+4*s}], {c}")
    for n in range(2):
        for r in range(4): a(f"v_cndmask_b32 v{20+4*n+r}, v{20+4*n+r}, v{28+4*n+r}, s[68:69]")
        a(f"ds_write_b128 v57, v[{20+4*n}:{23+4*n}] offset:{RP + n*64}")
    a("s_waitcnt lgkmcnt(0)\ns_barrier")
    stamp(9)
    a("s_cmp_gt_u32 s3, 1\ns_cbranch_scc1 L_out")
    for w in range(4):
        for mu in range(2):
            r = 62 + (mu*4 + w) * 2
            a(f"ds_read_b64 v[{r}:{r+1}], v58 offset:{RP + w*2048 + mu*1024}")
    a("""
    s_waitcnt lgkmcnt(0)
    v_pk_add_f32 v[62:63], v[62:63], v[64:65]
    v_pk_add_f32 v[66:67], v[66:67], v[68:69]
    v_pk_add_f32 v[70:71], v[70:71], v[72:73]
    v_pk_add_f32 v[74:75], v[74:75], v[76:77]
    v_pk_add_f32 v[62:63], v[62:63], v[66:67]
    v_pk_add_f32 v[70:71], v[70:71], v[74:75]
    v_mul_f32 v62, 0xbfb8aa3b, v62
    v_mul_f32 v63, 0xbfb8aa3b, v63
    v_exp_f32 v62, v62
    v_exp_f32 v63, v63
    v_add_f32 v62, 1.0, v62
    v_add_f32 v63, 1.0, v63
    v_rcp_f32 v62, v62
    v_rcp_f32 v63, v63
    v_pk_mul_f32 v[62:63], v[62:63], v[70:71]
    v_cvt_pk_bf16_f32 v62, v62, v63
    v_min_u32 v62, -2, v62
    global_store_dword v59, v62, s[30:31] sc1
    """)
    stamp(10)
    a("s_branch L_out")
    a.vm = []
    a("L_D:\ns_barrier")
    for e in range(nex, 14): exdma(e)
    a(f"""
    v_lshl_add_u32 v55, v1, 3, s65
    s_add_u32 s52, s30, {HH}
    s_addc_u32 s53, s31, 0
    s_mov_b32 s54, 27648
    s_mov_b32 s55, 0x20000
    v_lshrrev_b32 v53, 4, v1
    v_bfe_u32 v54, v1, 3, 1
    v_and_b32 v56, 7, v1
    v_lshlrev_b32 v57, 9, v54
    v_lshl_add_u32 v57, v53, 7, v57
    v_lshl_add_u32 v57, v56, 4, v57
    s_mul_i32 s58, s3, 7168
    v_add_u32 v57, s58, v57
    v_add_u32 v58, 4096, v57
    v_lshlrev_b32 v59, 6, v52
    v_lshl_add_u32 v59, v53, 4, v59
    s_lshl_b32 s58, s3, 10
    v_add_u32 v59, s58, v59
    v_lshlrev_b32 v60, 3, v1
    v_lshrrev_b32 v61, 3, v1
    v_mul_u32_u24 v61, 1280, v61
    v_lshl_add_u32 v61, v56, 2, v61
    s_lshl_b32 s58, s61, 5
    v_add_u32 v61, s58, v61
    v_lshlrev_b32 v40, 1, v61
    v_add_u32 v40, {ACC}, v40
    s_mov_b32 s68, 0xff00ff00
    s_mov_b32 s69, 0xff00ff00
    """)
    for e in range(14):
        a.vmwait(f"E{e}")
        r = 96 + 4*e
        a(f"ds_read_b64_tr_b16 v[{r}:{r+1}], v55 offset:{e*ESTR}")
        a(f"ds_read_b64_tr_b16 v[{r+2}:{r+3}], v55 offset:{e*ESTR+512}")
    stamp(6)
    sigpoll()
    stamp(7)
    a("global_load_dwordx2 v[42:43], v40, s[30:31] sc1")
    l0, l1 = lab("dp"), lab("dd")
    a(f"s_mov_b32 s66, 0\n{l0}:")
    for p in range(7):
        a(f"buffer_load_dwordx4 v[{160+4*p}:{163+4*p}], v{57 + p//4}, s[52:55], 0 offen offset:{(p%4)*1024} sc1")
    a(f"s_add_u32 s66, s66, 1\ns_cmp_gt_u32 s66, {SPIN}\ns_cbranch_scc1 {l1}")
    for p in range(7):
        a(f"s_waitcnt vmcnt({6-p})")
        if p == 0: a("v_max3_u32 v56, v160, v161, v162\nv_max_u32 v56, v56, v163")
        else: a(f"v_max3_u32 v56, v56, v{160+4*p}, v{161+4*p}\nv_max3_u32 v56, v56, v{162+4*p}, v{163+4*p}")
    a(f"v_cmp_eq_u32 vcc, -1, v56\ns_cbranch_vccnz {l0}\n{l1}:\ns_waitcnt vmcnt(0) lgkmcnt(0)")
    stamp(8)
    for p in range(7):
        for y in range(2):
            r = 96 + 4 * (2*p + y)
            d = 20 + 4*y
            c = "0" if p == 0 else f"v[{d}:{d+3}]"
            a(f"v_mfma_f32_16x16x32_bf16 v[{d}:{d+3}], v[{r}:{r+3}], v[{160+4*p}:{163+4*p}], {c}")
    a("v_cvt_pk_bf16_f32 v42, v42, v43\nv_and_b32 v43, 0xffff0000, v42\nv_lshlrev_b32 v42, 16, v42")
    for r in range(4): a(f"v_cndmask_b32 v{20+r}, v{20+r}, v{24+r}, s[68:69]")
    a(f"ds_write_b128 v59, v[20:23] offset:{RP}")
    a("s_waitcnt lgkmcnt(0)\ns_barrier")
    stamp(9)
    a("s_cmp_lg_u32 s3, 0\ns_cbranch_scc1 L_out")
    for k in range(8): a(f"ds_read_b64 v[{62+2*k}:{63+2*k}], v60 offset:{RP + k*512}")
    a("""
    s_waitcnt lgkmcnt(0)
    v_pk_add_f32 v[62:63], v[62:63], v[64:65]
    v_pk_add_f32 v[66:67], v[66:67], v[68:69]
    v_pk_add_f32 v[70:71], v[70:71], v[72:73]
    v_pk_add_f32 v[74:75], v[74:75], v[76:77]
    v_pk_add_f32 v[62:63], v[62:63], v[66:67]
    v_pk_add_f32 v[70:71], v[70:71], v[74:75]
    v_pk_add_f32 v[62:63], v[62:63], v[70:71]
    v_cvt_pk_bf16_f32 v62, v62, v63
    v_and_b32 v63, 0xffff0000, v62
    v_lshlrev_b32 v62, 16, v62
    v_pk_add_f32 v[62:63], v[62:63], v[42:43]
    v_cvt_pk_bf16_f32 v62, v62, v63
    global_store_dword v61, v62, s[26:27]
    """)
    stamp(10)
    a("L_out:")
    if stamps:
        a("s_waitcnt vmcnt(0)")
        stamp(11)
        a(f"""
        s_getreg_b32 s94, hwreg(HW_REG_XCC_ID)
        s_mov_b32 s96, s60
        s_waitcnt lgkmcnt(0)
        s_lshl_b32 s58, s2, 2
        s_add_u32 s58, s58, s3
        s_lshl_b32 s58, s58, 6
        s_add_u32 s58, s58, {STAMP}
        v_mov_b32 v52, s58
        """)
        for i in range(14):
            a(f"v_mov_b32 v53, s{70+2*i}\nglobal_store_dword v52, v53, s[30:31] offset:{4*i}")
    if amp is not None:
        i0, i1, role, idx, k = amp
        l0 = lab("amp")
        a(f"""
        s_cmp_lg_u32 s60, {role}
        s_cbranch_scc1 L_end
        s_cmp_lg_u32 s61, {idx}
        s_cbranch_scc1 L_end
        s_cmp_lg_u32 s3, 0
        s_cbranch_scc1 L_end
        s_sub_u32 s58, s{70+2*i1}, s{70+2*i0}
        s_min_u32 s58, s58, 10000
        s_mul_i32 s58, s58, {k}
        s_add_u32 s58, s58, s92
        {l0}:
        s_memrealtime s[66:67]
        s_waitcnt lgkmcnt(0)
        s_sub_u32 s59, s66, s58
        s_cmp_lt_i32 s59, 0
        s_cbranch_scc1 {l0}
        """)
    a("L_end:\ns_endpgm")
    a.raw('.section .rodata,"a"')
    a.raw(".p2align 6")
    a.raw(f".amdhsa_kernel {NAME}_kernel")
    a.raw("  .amdhsa_next_free_vgpr 512\n  .amdhsa_next_free_sgpr 102\n  .amdhsa_accum_offset 256")
    a.raw("  .amdhsa_group_segment_fixed_size 0\n  .amdhsa_kernarg_size 96\n  .amdhsa_user_sgpr_count 2")
    a.raw("  .amdhsa_user_sgpr_kernarg_segment_ptr 1\n  .amdhsa_system_sgpr_workgroup_id_x 1")
    a.raw("  .amdhsa_float_denorm_mode_32 3")
    a.raw(".end_amdhsa_kernel")
    return a.text()

if __name__ == "__main__":
    out = sys.argv[1] if len(sys.argv) > 1 else "cdna_kernels/" + NAME + ".s"
    kw = eval("dict(" + (sys.argv[2] if len(sys.argv) > 2 else "") + ")")
    open(out, "w").write(gen(**kw))
```

```python
import sys
sys.path.insert(0, "gen")
from asmlib import Asm
NAME = "sequential_preLN__sliding_block_cached__glu_gated_glu__decode"
HEADER = open("cdna_kernels/" + NAME + ".s.ref").read().split("; Override launch")[0]

QP   = 0x000000
OS   = 0x080000
ACC  = 0x090000
HH   = 0x098000
SIG  = 0x0A0000
QC   = 0x0A8000
STAMP = 0x100000
XN   = 0
SM   = 10752
WQL  = 16384
EXL  = 36864
ESTR = 1088
WSTR = 20 * ESTR
LDS_BYTES = EXL + 4 * WSTR
XSTR = 1312
SPIN = 1 << 16

def gen(W=5, WR=6, stamps=False, nex=8, ex_at=72, ex_every=4, dbgdump=False, qk_at=64, poll_at=52, amp=None, W0=None, W0_until=0, WQK=None, qk_per=4, WE=None, WE_from=128, pv_per=4, early=False, x_at=8, wq_every=2, verbose=False, trace=False, touch=False, amp2=None):
    a = Asm()
    a.raw(HEADER.rstrip())
    a.raw(f"; @launch grid=(256,1,1) block=(256,1,1) lds={LDS_BYTES}")
    a.raw('.amdgcn_target "amdgcn-amd-amdhsa--gfx950"')
    a.raw(".text")
    a.raw(f".globl {NAME}_kernel")
    a.raw(".p2align 8")
    a.raw(f".type {NAME}_kernel,@function")
    a.raw(f"{NAME}_kernel:")
    nstamp = [0]
    def stamp(i, e=False):
        if stamps and (e == early or not (5 <= i <= 10)):
            a(f"s_memrealtime s[{70+2*i}:{71+2*i}]")
    uid = [0]
    def lab(p):
        uid[0] += 1
        return f"L_{p}{uid[0]}"
    a("s_load_dwordx4 s[8:11], s[0:1], 0")
    stamp(0)
    a(f"""
    s_load_dwordx4 s[12:15], s[0:1], 16
    s_load_dwordx16 s[16:31], s[0:1], 32
    s_cmp_ge_u32 s2, 256
    s_cbranch_scc1 L_end
    v_lshlrev_b32 v2, 4, v0
    s_lshl_b32 s7, s2, 20
    s_add_u32 s7, s7, 0xC0000
    s_mov_b32 s34, 0x40000
    s_mov_b32 s35, 0x20000
    s_waitcnt lgkmcnt(0)
    s_add_u32 s32, s10, s7
    s_addc_u32 s33, s11, 0
    """)
    def pro_a():
        if stamps:
            for i in range(1, 14):
                if i != 5: a(f"s_mov_b32 s{70+2*i}, 0")
        a(f"""
        s_add_u32 s36, s12, s7
        s_addc_u32 s37, s13, 0
        v_lshrrev_b32 v52, 6, v0
        v_and_b32 v1, 63, v0
        v_readfirstlane_b32 s3, v52
        s_lshr_b32 s4, s2, 5
        s_and_b32 s5, s2, 31
        v_lshrrev_b32 v52, 5, v0
        v_and_b32 v53, 31, v0
        v_mul_u32_u24 v37, 1280, v52
        v_lshl_add_u32 v37, v53, 3, v37
        s_lshr_b32 s56, s4, 1
        s_and_b32 s57, s4, 1
        s_mul_i32 s58, s56, 160
        s_mul_i32 s59, s3, 40
        s_add_u32 s58, s58, s59
        v_lshrrev_b32 v52, 3, v1
        v_add_u32 v52, s58, v52
        v_lshlrev_b32 v52, 13, v52
        v_and_b32 v53, 7, v1
        v_lshl_add_u32 v52, v53, 4, v52
        s_lshl_b32 s58, s5, 8
        s_lshl_b32 s59, s57, 7
        s_add_u32 s58, s58, s59
        v_add_u32 v36, s58, v52
        s_mul_i32 s7, s3, 5120
        s_add_u32 s7, s7, {WQL}
        s_mov_b32 s38, 0x40000
        s_mov_b32 s39, 0x20000
        s_mov_b32 s42, 5242880
        s_mov_b32 s43, 0x20000
        s_mov_b32 s40, s14
        s_mov_b32 s41, s15
        """)
    def qc_clear():
        l = lab("qc")
        a(f"""
        v_and_b32 v88, 31, v1
        v_lshlrev_b32 v88, 7, v88
        v_add_u32 v88, {QC}, v88
        v_mov_b32 v89, 0
        s_or_b32 s58, s2, s3
        s_cbranch_scc1 {l}
        """)
        a("global_store_dword v88, v89, s[30:31] sc1", track=False)
        a(f"{l}:")
    def qc_flag():
        l = lab("qf")
        a(f"""
        v_mov_b32 v86, 1
        s_or_b32 s58, s2, s3
        s_cbranch_scc1 {l}
        s_mov_b64 exec, 1
        """)
        a("global_store_dword v89, v86, s[28:29] sc1", track=False)
        a(f"s_mov_b64 exec, -1\n{l}:")
    def xloads():
        for j in range(5):
            a(f"global_load_dwordx2 v[{52+2*j}:{53+2*j}], v37, s[8:9] offset:{j*256}", tag="x")
    def wqdma(e):
        a(f"s_add_u32 m0, s7, {e*1024}")
        a(f"s_mov_b32 s58, {e*65536}")
        a(f"buffer_load_dwordx4 v36, s[40:43], s58 offen nt lds", tag="wq")

    def kreg(i):
        return f"v[{96+4*i}:{99+4*i}]" if i < 40 else f"a[{4*(i-40)}:{4*(i-40)+3}]"
    def vreg(i):
        return f"a[{96+4*i}:{99+4*i}]" if i < 40 else f"a[{4*(i-40)}:{4*(i-40)+3}]"
    Wmax = max(W, WR)
    qkr = [999, 999]
    def wins(n):
        w = W
        if W0 and n < W0_until: w = W0
        if WQK and qkr[0] <= n <= qkr[1]: w = WQK
        if WE and n >= WE_from: w = WE
        return w, w + (WR - W)
    def window(n):
        w, wr = wins(n)
        def cnt(k):
            big = [i for i, t in enumerate(a.vm) if t and (t[0] in "KVE" or t == "wq")]
            if len(big) < k: return None
            return len(a.vm) - 1 - big[-k]
        c2 = cnt(w); c1 = cnt(wr)
        if c1 is not None: a(f"s_waitcnt vmcnt({c1})")
        if w != wr and c2 is not None:
            l = lab("w")
            a.raw(f"    s_cbranch_vccnz {l}")
            a.raw(f"    s_waitcnt vmcnt({c2})")
            a.raw(f"{l}:")
    def issue(n):
        i = n % 64
        a(f"s_mov_b32 s6, {i*4096}")
        if n < 64: a(f"buffer_load_dwordx4 {kreg(i)}, v2, s[32:35], s6 offen nt", tag=f"K{i}")
        else:      a(f"buffer_load_dwordx4 {vreg(i)}, v2, s[36:39], s6 offen nt", tag=f"V{i}")
    n0 = W0 or W
    for n in range(n0):
        issue(n)
    stamp(5, True)
    pro_a()
    a(f"""
    s_and_b32 s58, s5, 7
    s_mul_i32 s58, s58, 12
    s_lshr_b32 s59, s5, 3
    s_mul_i32 s59, s59, 3
    s_add_u32 s58, s58, s59
    s_add_u32 s58, s58, s4
    s_sub_u32 s58, s58, 5
    s_sub_u32 s59, s58, 40
    s_cmp_lt_u32 s58, 40
    s_cselect_b32 s60, 2, 1
    s_cselect_b32 s61, s58, s59
    s_cmp_ge_u32 s58, 94
    s_cselect_b32 s60, 3, s60
    s_cmp_lt_u32 s4, 5
    s_cselect_b32 s60, 0, s60
    s_cselect_b32 s61, s4, s61
    s_cselect_b64 vcc, 0, -1
    """)
    lw, lf, ld, lj = lab("rw"), lab("rf"), lab("rd"), lab("rj")
    a(f"""
    s_mov_b32 s47, 0x20000
    s_mov_b32 s51, 0x20000
    s_mov_b32 s64, 0
    s_mul_i32 s65, s3, {WSTR}
    s_add_u32 s65, s65, {EXL}
    s_cmp_eq_u32 s60, 1
    s_cbranch_scc1 {lf}
    s_cmp_eq_u32 s60, 0
    s_cbranch_scc1 {lw}
    s_mov_b32 s44, s24
    s_mov_b32 s45, s25
    s_cmp_eq_u32 s60, 2
    s_cselect_b32 s46, 2211840, 0
    s_mov_b32 s48, s24
    s_mov_b32 s49, s25
    s_mov_b32 s50, s46
    s_mov_b32 s62, 40960
    s_mov_b32 s63, 40960
    s_mul_i32 s58, s3, 448
    v_lshrrev_b32 v62, 1, v1
    v_add_u32 v62, s58, v62
    v_mul_u32_u24 v62, 1280, v62
    v_and_b32 v63, 1, v1
    v_lshl_add_u32 v62, v63, 4, v62
    s_lshl_b32 s58, s61, 5
    v_add_u32 v3, s58, v62
    s_branch {lj}
    {lf}:
    s_mov_b32 s44, s20
    s_mov_b32 s45, s21
    s_mov_b32 s46, 2211840
    s_mov_b32 s48, s22
    s_mov_b32 s49, s23
    s_mov_b32 s50, 2211840
    s_mov_b32 s62, 0
    s_mov_b32 s63, 55296
    s_mul_i32 s58, s3, 160
    v_lshrrev_b32 v62, 2, v1
    v_add_u32 v62, s58, v62
    v_mul_u32_u24 v62, 3456, v62
    v_lshrrev_b32 v63, 4, v1
    v_and_b32 v63, 2, v63
    v_xor_b32 v63, v63, v1
    v_and_b32 v63, 3, v63
    v_lshl_add_u32 v62, v63, 4, v62
    s_lshl_b32 s58, s61, 6
    v_add_u32 v3, s58, v62
    s_branch {lj}
    {lw}:
    s_mov_b32 s44, s16
    s_mov_b32 s45, s17
    s_mov_b32 s46, 5242880
    s_mov_b32 s48, s16
    s_mov_b32 s49, s17
    s_mov_b32 s50, 5242880
    s_mov_b32 s62, 5120
    s_mov_b32 s63, 5120
    s_lshl_b32 s58, s5, 7
    s_lshl_b32 s59, s3, 5
    s_add_u32 s58, s58, s59
    v_lshrrev_b32 v63, 4, v1
    v_add_u32 v62, s58, v63
    v_mul_u32_u24 v62, 1280, v62
    v_lshlrev_b32 v63, 1, v63
    v_xor_b32 v63, v63, v1
    v_and_b32 v63, 15, v63
    v_lshl_add_u32 v62, v63, 4, v62
    s_lshl_b32 s58, s61, 8
    v_add_u32 v3, s58, v62
    {lj}:
    """)
    def exdma(e):
        srd = "s[44:47]" if e % 2 == 0 else "s[48:51]"
        a(f"s_add_u32 m0, s65, {e*ESTR}")
        a(f"buffer_load_dwordx4 v3, {srd}, s64 offen nt lds", tag=f"E{e}")
        a(f"s_add_u32 s64, s64, s{62 + e % 2}")
    if touch:
        a("v_mov_b32 v62, 0\ns_mov_b64 exec, 1")
        a("buffer_load_dword v63, v2, s[36:39], 0 offen", tag="t")
        a("global_load_dword v63, v62, s[8:9]", tag="t")
        a("buffer_load_dword v63, v36, s[40:43], 0 offen", tag="t")
        a("global_load_dword v63, v62, s[30:31]", tag="t")
        a("global_load_dword v63, v62, s[28:29] offset:128", tag="t")
        a("global_load_dword v63, v62, s[26:27]", tag="t")
        a("buffer_load_dword v63, v3, s[44:47], 0 offen", tag="t")
        a("buffer_load_dword v63, v3, s[48:51], 0 offen", tag="t")
        a("s_mov_b64 exec, -1")
    a("""
    v_and_b32 v64, 1, v1
    v_mov_b32 v65, 0xffff
    v_lshlrev_b32 v64, 4, v64
    v_lshlrev_b32 v64, v64, v65
    v_bfe_u32 v65, v1, 1, 2
    """)
    for r in range(4):
        a(f"v_cmp_eq_u32 s[58:59], {r}, v65")
        a(f"v_cndmask_b32 v{4+r}, 0, v64, s[58:59]")
    l1, l2, l3 = lab("c"), lab("c"), lab("c")
    def clears():
      a(f"""
    s_lshl_b32 s58, s5, 3
    s_add_u32 s58, s58, s4
    s_lshl_b32 s58, s58, 8
    s_add_u32 s58, s58, {OS}
    v_lshl_add_u32 v93, v1, 2, s58
    v_mov_b32 v86, -1
    s_cmp_lg_u32 s3, 0
    s_cbranch_scc1 {l1}
    """)
      a("global_store_dword v93, v86, s[30:31] sc1", track=False)
      a(f"""
    {l1}:
    s_lshl_b32 s58, s61, 9
    s_add_u32 s58, s58, {HH}
    v_lshl_add_u32 v87, v0, 2, s58
    s_cmp_lg_u32 s60, 1
    s_cbranch_scc1 {l2}
    s_cmp_gt_u32 s3, 1
    s_cbranch_scc1 {l2}
    """)
      a("global_store_dword v87, v86, s[30:31] sc1", track=False)
      a(f"""
    {l2}:
    s_lshl_b32 s58, s2, 10
    s_add_u32 s58, s58, {SIG}
    v_lshl_add_u32 v87, v0, 2, s58
    v_mov_b32 v86, 0
    s_cmp_ge_u32 s2, 16
    s_cbranch_scc1 {l3}
    """)
      a("global_store_dword v87, v86, s[30:31] sc1", track=False)
      a(f"{l3}:")

    F = list(range(62, 82))
    def red32(r, t, op="v_add_f32"):
        o = []
        for k in (8, 4, 2, 1):
            o.append(f"{op}_dpp v{r}, v{r}, v{r} row_ror:{k} row_mask:0xf bank_mask:0xf")
        o += [f"v_mov_b32 v{t}, v{r}", f"v_permlane16_swap_b32 v{r}, v{t}", f"{op} v{r}, v{r}, v{t}"]
        return o
    def rbf(r):
        return [f"v_cvt_pk_bf16_f32 v{r}, v{r}, v{r}", f"v_lshlrev_b32 v{r}, 16, v{r}"]
    chunks = {}
    def at(n, f): chunks.setdefault(n, []).append(f)

    def ln1_a():
        stamp(6, True)
        a.vmwait("x")
        stamp(7, True)
        for j in range(5):
            for t in range(2):
                a(f"v_lshlrev_b32 v{F[4*j+2*t]}, 16, v{52+2*j+t}")
                a(f"v_and_b32 v{F[4*j+2*t+1]}, 0xffff0000, v{52+2*j+t}")
        l = lab("ai")
        a(f"""
        v_lshl_add_u32 v92, v37, 1, 0
        v_add_u32 v92, {ACC}, v92
        s_cmp_lg_u32 s2, 0
        s_cbranch_scc1 {l}
        """)
        for j in range(5):
            a(f"global_store_dwordx4 v92, v[{F[4*j]}:{F[4*j+3]}], s[30:31] offset:{j*512} sc1", track=False)
        a(f"{l}:")
    def ln1_a2():
        a(f"v_pk_add_f32 v[82:83], v[{F[0]}:{F[1]}], v[{F[2]}:{F[3]}]")
        for k in range(2, 10):
            a(f"v_pk_add_f32 v[82:83], v[82:83], v[{F[2*k]}:{F[2*k+1]}]")
        a("v_add_f32 v82, v82, v83")
        a("\n".join(red32(82, 83)))
        a("v_mul_f32 v82, 0x3acccccd, v82")
    def ln1_b():
        a("v_mov_b32 v84, 0\nv_mov_b32 v85, 0\nv_mov_b32 v83, v82")
        for k in range(10):
            a(f"v_pk_add_f32 v[86:87], v[{F[2*k]}:{F[2*k+1]}], v[82:83] neg_lo:[0,1] neg_hi:[0,1]")
            a(f"v_pk_fma_f32 v[84:85], v[86:87], v[86:87], v[84:85]")
    def ln1_b2():
        a("v_add_f32 v84, v84, v85")
        a("\n".join(red32(84, 85)))
        a("v_mul_f32 v84, 0x3acccccd, v84")
        a("\n".join(rbf(84)))
        a("v_add_f32 v84, 0x3727c5ac, v84")
        a("\n".join(rbf(84)))
        a("v_sqrt_f32 v84, v84")
        a("\n".join(rbf(84)))
        a("v_rcp_f32 v84, v84")
        a("\n".join(rbf(82)))
        a("v_mov_b32 v83, v82\nv_mov_b32 v85, v84")
    def ln1_c(js):
        def f():
            for j in js:
                for t in range(2):
                    k = 2 * j + t
                    x0, x1 = F[2*k], F[2*k+1]
                    a(f"v_pk_add_f32 v[{x0}:{x1}], v[{x0}:{x1}], v[82:83] neg_lo:[0,1] neg_hi:[0,1]")
                    a(f"v_cvt_pk_bf16_f32 v86, v{x0}, v{x1}")
                    a(f"v_lshlrev_b32 v{x0}, 16, v86")
                    a(f"v_and_b32 v{x1}, 0xffff0000, v86")
                    a(f"v_pk_mul_f32 v[{x0}:{x1}], v[{x0}:{x1}], v[84:85]")
                    a(f"v_cvt_pk_bf16_f32 v{52+k}, v{x0}, v{x1}")
                a(f"ds_write_b64 v91, v[{52+2*j}:{53+2*j}] offset:{XN + j*256}")
        return f
    def ln1_pre():
        a(f"""
        v_lshrrev_b32 v90, 5, v0
        v_mul_u32_u24 v91, {XSTR}, v90
        v_and_b32 v90, 31, v0
        v_lshl_add_u32 v91, v90, 3, v91
        """)
    def qgemm_0():
        a(f"""
        v_lshrrev_b32 v54, 4, v1
        v_bfe_u32 v55, v1, 2, 2
        v_lshl_add_u32 v55, v54, 3, v55
        v_lshlrev_b32 v52, 7, v55
        v_and_b32 v55, 3, v1
        v_lshl_add_u32 v52, v55, 3, v52
        s_lshl_b32 s58, s3, 5
        s_add_u32 s58, s58, {WQL}
        v_add_u32 v52, s58, v52
        v_and_b32 v55, 7, v1
        v_mul_u32_u24 v90, {XSTR}, v55
        v_lshl_add_u32 v90, v54, 4, v90
        s_mul_i32 s58, s56, 320
        v_add_u32 v53, s58, v90
        """)
    def qgemm_a():
        a.vmwait("wq", "lgkmcnt(0)")
        a("s_barrier")
        stamp(8, True)
        for s in range(5):
            a(f"ds_read_b64_tr_b16 v[{12+4*s}:{13+4*s}], v52 offset:{s*4096}")
            a(f"ds_read_b64_tr_b16 v[{14+4*s}:{15+4*s}], v52 offset:{s*4096+512}")
            a(f"ds_read_b128 v[{32+4*s}:{35+4*s}], v53 offset:{XN + s*64}")
        a(f"""
        v_lshlrev_b32 v55, 11, v55
        v_lshl_add_u32 v54, v54, 4, v55
        s_lshl_b32 s58, s5, 14
        s_lshl_b32 s59, s4, 8
        s_add_u32 s58, s58, s59
        s_lshl_b32 s59, s3, 6
        s_add_u32 s58, s58, s59
        s_add_u32 s58, s58, {QP}
        v_add_u32 v54, s58, v54
        """)
    def qgemm_b():
        a("s_waitcnt lgkmcnt(0)")
        for s in range(5):
            c = "0" if s == 0 else "v[56:59]"
            a(f"v_mfma_f32_16x16x32_bf16 v[56:59], v[{12+4*s}:{15+4*s}], v[{32+4*s}:{35+4*s}], {c}")
        l = lab("fl")
        a(f"s_cmp_lg_u32 s3, 0\ns_cbranch_scc1 {l}")
        a("global_load_dword v60, v89, s[28:29] sc1", track=False)
        a(f"{l}:")
        a("s_mov_b32 exec_lo, 0x00ff00ff\ns_mov_b32 exec_hi, 0x00ff00ff\ns_nop 3")
        a("global_store_dwordx4 v54, v[56:59], s[30:31] sc1", tag="qst")
        a("s_mov_b64 exec, -1")
        stamp(9, True)
    def qsignal():
        a.vmwait("qst")
        a("s_barrier")
        l, l0, l1 = lab("qs"), lab("qs"), lab("qs")
        a(f"""
        s_lshl_b32 s58, s5, 7
        s_add_u32 s58, s58, {QC}
        v_mov_b32 v52, s58
        v_mov_b32 v53, 1
        s_cmp_lg_u32 s3, 0
        s_cbranch_scc1 {l}
        s_mov_b64 exec, 1
        s_mov_b32 s57, 0
        {l0}:
        v_readfirstlane_b32 s58, v60
        s_cmp_lg_u32 s58, 0
        s_cbranch_scc1 {l1}
        s_add_u32 s57, s57, 1
        s_cmp_gt_u32 s57, {SPIN}
        s_cbranch_scc1 {l1}
        s_sleep 4
        """)
        a("global_load_dword v60, v89, s[28:29] sc1", track=False)
        a.raw("    s_waitcnt vmcnt(0)")
        a(f"s_branch {l0}\n{l1}:")
        a("global_atomic_add v52, v53, s[30:31]", track=False)
        a(f"s_mov_b64 exec, -1\n{l}:")
        stamp(1)
    def qpoll_a():
        a("global_load_dword v53, v52, s[30:31] sc1", tag="poll")
    def gpoll_a():
        a("v_mov_b32 v52, v88")
        a("global_load_dword v53, v52, s[30:31] sc1", tag="poll")
    def pollchk(allh):
        a.vmwait("poll")
        l0, l1 = lab("pl"), lab("pd")
        chk = "s_cmp_eq_u32 s58, 0"
        a(f"""
        s_mov_b32 s57, 0
        {l0}:
        v_cmp_gt_u32 s[58:59], 8, v53
        {chk}
        s_cbranch_scc1 {l1}
        s_add_u32 s57, s57, 1
        s_cmp_gt_u32 s57, {SPIN}
        s_cbranch_scc1 {l1}
        s_sleep 8
        """)
        a("global_load_dword v53, v52, s[30:31] sc1", track=False)
        a.raw("    s_waitcnt vmcnt(0)")
        a(f"s_branch {l0}\n{l1}:")
    def qpoll_b():
        pollchk(False)
        stamp(2)
        a(f"""
        v_lshrrev_b32 v52, 4, v1
        v_lshlrev_b32 v52, 9, v52
        v_and_b32 v53, 15, v1
        v_lshl_add_u32 v52, v53, 5, v52
        s_lshl_b32 s58, s5, 14
        s_lshl_b32 s59, s4, 11
        s_add_u32 s58, s58, s59
        s_add_u32 s58, s58, {QP}
        v_add_u32 v52, s58, v52
        """)
        a("global_load_dwordx4 v[56:59], v52, s[30:31] sc1", tag="qg")
        a("global_load_dwordx4 v[60:63], v52, s[30:31] offset:16 sc1", tag="qg")
    def qfin0(sw):
        a.vmwait("qg")
        for r in range(8): a(f"v_mov_b32 v{64+r}, v{56+r}")
        for r in range(8): a(f"{sw} v{56+r}, v{64+r}")
        for r in range(8): a(f"v_add_f32 v{56+r}, v{56+r}, v{64+r}")
    def qfin():
        qfin0("v_permlane16_swap_b32")
        for r in range(4): a(f"v_cvt_pk_bf16_f32 v{8+r}, v{56+2*r}, v{57+2*r}")
        a("s_mov_b32 s66, 0xaaaaaaaa\ns_mov_b32 s67, 0xaaaaaaaa\ns_mov_b32 s68, 0xcccccccc\ns_mov_b32 s69, 0xcccccccc")
    P = list(range(36, 52))
    def qk(i0, cnt):
        def f():
            a.vmwait(f"K{i0+cnt-1}")
            srcs = []
            for i in range(i0, i0 + cnt):
                t = i % 16
                if i < 40:
                    src = [96 + 4*i + r for r in range(4)]
                else:
                    base = 28 + 4 * (i % 2)
                    src = [base + r for r in range(4)]
                    for r in range(4): a(f"v_accvgpr_read_b32 v{base+r}, a{4*(i-40)+r}")
                srcs.append((t, src))
                a(f"v_mov_b32 v{P[t]}, 0")
                if len(srcs) == 2:
                    for r in range(4):
                        for (t2, s2) in srcs: a(f"v_dot2c_f32_bf16 v{P[t2]}, v{s2[r]}, v{8+r}")
                    srcs.clear()
        return f
    def qkred(m):
        def f():
            if True:
                for t in range(8):
                    a(f"v_add_f32_dpp v{P[t]}, v{P[t]}, v{P[t]} row_ror:8 row_mask:0xf bank_mask:0x3")
                for t in range(8):
                    a(f"v_add_f32_dpp v{P[t]}, v{P[t+8]}, v{P[t+8]} row_ror:8 row_mask:0xf bank_mask:0xc")
                for t in range(4):
                    a(f"v_add_f32_dpp v{P[t]}, v{P[t]}, v{P[t]} row_ror:12 row_mask:0xf bank_mask:0x5")
                for t in range(4):
                    a(f"v_add_f32_dpp v{P[t]}, v{P[t+4]}, v{P[t+4]} row_ror:4 row_mask:0xf bank_mask:0xa")
                for t in range(4):
                    a(f"v_add_f32_dpp v{P[t]}, v{P[t]}, v{P[t]} quad_perm:[1,0,3,2] row_mask:0xf bank_mask:0xf")
                for t in range(4):
                    a(f"v_add_f32_dpp v{P[t]}, v{P[t]}, v{P[t]} quad_perm:[2,3,0,1] row_mask:0xf bank_mask:0xf")
                a(f"v_cndmask_b32 v{P[0]}, v{P[0]}, v{P[1]}, s[66:67]")
                a(f"v_cndmask_b32 v{P[2]}, v{P[2]}, v{P[3]}, s[66:67]")
                a(f"v_cndmask_b32 v{12+m}, v{P[0]}, v{P[2]}, s[68:69]")
        return f
    def red64(r, t, op):
        o = red32(r, t, op)
        o += [f"v_mov_b32 v{t}, v{r}", f"v_permlane32_swap_b32 v{r}, v{t}", f"{op} v{r}, v{r}, v{t}"]
        return o
    def softmax_a():
        a("v_cvt_pk_bf16_f32 v52, v12, v13\nv_cvt_pk_bf16_f32 v53, v14, v15")
        a("v_lshlrev_b32 v12, 16, v52\nv_and_b32 v13, 0xffff0000, v52\nv_lshlrev_b32 v14, 16, v53\nv_and_b32 v15, 0xffff0000, v53")
        for m in range(4): a(f"v_mul_f32 v{12+m}, 0x3db504f3, v{12+m}")
        a("v_cvt_pk_bf16_f32 v52, v12, v13\nv_cvt_pk_bf16_f32 v53, v14, v15")
        a("v_lshlrev_b32 v12, 16, v52\nv_and_b32 v13, 0xffff0000, v52\nv_lshlrev_b32 v14, 16, v53\nv_and_b32 v15, 0xffff0000, v53")
        if dbgdump:
            a(f"s_lshl_b32 s58, s2, 12\ns_lshl_b32 s59, s3, 10\ns_add_u32 s58, s58, s59\ns_add_u32 s58, s58, 0x200000\nv_lshl_add_u32 v54, v1, 2, s58")
            for m in range(4): a(f"global_store_dword v54, v{12+m}, s[30:31] offset:{m*256}", track=False)
        a("v_max_f32 v52, v12, v13\nv_max3_f32 v52, v52, v14, v15")
        a("\n".join(red64(52, 53, "v_max_f32")))
        for m in range(4): a(f"v_sub_f32 v{12+m}, v{12+m}, v52")
        for m in range(4): a(f"v_mul_f32 v{12+m}, 0x3fb8aa3b, v{12+m}")
        for m in range(4): a(f"v_exp_f32 v{12+m}, v{12+m}")
        a("v_add_f32 v53, v12, v13\nv_add_f32 v54, v14, v15\nv_add_f32 v53, v53, v54")
        a("\n".join(red64(53, 54, "v_add_f32")))
        a(f"s_lshl_b32 s58, s3, 3\nv_mov_b32 v54, s58\nds_write_b64 v54, v[52:53] offset:{SM}")
    def softmax_b():
        a("s_waitcnt lgkmcnt(0)\ns_barrier\nv_mov_b32 v54, 0")
        a(f"ds_read_b128 v[56:59], v54 offset:{SM}\nds_read_b128 v[60:63], v54 offset:{SM+16}")
        a("s_waitcnt lgkmcnt(0)")
        a("v_max_f32 v54, v56, v58\nv_max3_f32 v54, v54, v60, v62")
        for r in (56, 58, 60, 62, 52): a(f"v_sub_f32 v{r}, v{r}, v54")
        for r in (56, 58, 60, 62, 52): a(f"v_mul_f32 v{r}, 0x3fb8aa3b, v{r}")
        for r in (56, 58, 60, 62, 52): a(f"v_exp_f32 v{r}, v{r}")
        a("v_mul_f32 v54, v56, v57\nv_fmac_f32 v54, v58, v59\nv_fmac_f32 v54, v60, v61\nv_fmac_f32 v54, v62, v63")
        a("v_rcp_f32 v54, v54\nv_mul_f32 v52, v52, v54")
        for m in range(4): a(f"v_mul_f32 v{12+m}, v{12+m}, v52")
        for m in range(4): a(f"v_cvt_pk_bf16_f32 v{12+m}, v{12+m}, v{12+m}")
        build(0)
        stamp(3)
    def build(i):
        b = 20 + 4 * (i % 2)
        for r in range(4):
            a(f"v_and_b32_dpp v{b+r}, v{12 + i//16}, v{4+r} row_newbcast:{i%16} row_mask:0xf bank_mask:0xf")
    def pv(i):
        if i + 1 < 64: build(i + 1)
        a.vmwait(f"V{i}")
        b = 20 + 4 * (i % 2)
        c = "0" if i == 0 else "v[16:19]"
        a(f"v_mfma_f32_16x16x32_bf16 v[16:19], v[{b}:{b+3}], {vreg(i)}, {c}")

    xa = max(x_at, n0)
    wqs = [xa + 1 + wq_every * e for e in range(5)]
    Q = [(xa, None, lambda: (qc_clear(), xloads(), ln1_pre())), (0, "x", lambda: (qc_flag(), ln1_a()))]
    Q += [(0, None, f) for f in (ln1_a2, ln1_b, ln1_b2, ln1_c([0]), ln1_c([1, 2]), ln1_c([3, 4]), clears, qgemm_0)]
    Q += [(wqs[-1] + 1, "wq", qgemm_a), (0, None, qgemm_b), (0, "qst", qsignal)]
    Q += [(poll_at, None, qpoll_a), (0, "poll", qpoll_b), (0, "qg", lambda: qfin0("v_permlane32_swap_b32")), (0, None, qfin)]
    kdone = [0]
    def mkqk(i):
        f = qk(i, qk_per)
        def g():
            if i == 0: qkr[0] = cur[0]
            f(); kdone[0] = i + qk_per
        return g
    for i in range(0, 64, qk_per):
        Q.append((max(qk_at, i + qk_per), f"K{i+qk_per-1}", mkqk(i)))
        if (i + qk_per) % 16 == 0: Q.append((0, None, qkred((i + qk_per) // 16 - 1)))
    smb = [999]
    def smb_f():
        softmax_b(); smb[0] = cur[0]; qkr[1] = cur[0] + 1
    Q += [(0, None, softmax_a), (0, None, smb_f), (0, None, gpoll_a), (0, "poll", lambda: pollchk(True))]
    pvdone = [0]
    exi = 0
    cur = [0]
    log = []
    for n in range(n0, 128):
        cur[0] = n
        window(n)
        if trace:
            if n > n0:
                a("s_waitcnt lgkmcnt(0)")
                a(f"v_writelane_b32 v{94 + (n-1)//64}, s98, {(n-1)%64}")
            a("s_memrealtime s[98:99]")
        assert n < 104 or kdone[0] > n - 64
        issue(n)
        if n in wqs:
            window(n); wqdma(wqs.index(n))
        if n >= ex_at and (n - ex_at) % ex_every == 0 and exi < nex:
            window(n); exdma(exi); exi += 1
        if Q and Q[0][0] <= n and (Q[0][1] is None or Q[0][1] not in a.vm):
            f = Q.pop(0)[2]; f(); log.append((n, getattr(f, "__name__", "?")))
        if n == 30: stamp(10, True)
        if n > smb[0]:
            c = 0
            while pvdone[0] <= n - 64 and f"V{pvdone[0]}" not in a.vm and c < pv_per:
                pv(pvdone[0]); pvdone[0] += 1; c += 1
    assert not Q
    if verbose: print(log, "pv backlog", 64 - pvdone[0])
    assert exi == nex
    if trace:
        a(f"""
        s_lshl_b32 s58, s2, 11
        s_lshl_b32 s59, s3, 9
        s_add_u32 s58, s58, s59
        s_add_u32 s58, s58, 0x300000
        v_lshl_add_u32 v52, v1, 2, s58
        """)
        a("global_store_dword v52, v94, s[30:31]", track=False)
        a("global_store_dword v52, v95, s[30:31] offset:256", track=False)
    a(f"""
    v_and_b32 v52, 15, v1
    v_bfe_u32 v53, v1, 4, 1
    v_lshlrev_b32 v54, 5, v52
    v_lshl_add_u32 v54, v53, 4, v54
    s_lshl_b32 s58, s3, 9
    v_add_u32 v54, s58, v54
    v_lshlrev_b32 v55, 3, v1
    """)
    while pvdone[0] < 64:
        pv(pvdone[0]); pvdone[0] += 1
    stamp(4)
    OP = SM + 64
    a(f"ds_write_b128 v54, v[16:19] offset:{OP}")
    a("s_waitcnt vmcnt(0) lgkmcnt(0)\ns_barrier")
    lp = lab("pub")
    a(f"s_cmp_lg_u32 s3, 0\ns_cbranch_scc1 {lp}")
    for w in range(4): a(f"ds_read_b64 v[{56+2*w}:{57+2*w}], v55 offset:{OP + w*512}")
    a("""
    s_waitcnt lgkmcnt(0)
    v_pk_add_f32 v[56:57], v[56:57], v[58:59]
    v_pk_add_f32 v[60:61], v[60:61], v[62:63]
    v_pk_add_f32 v[56:57], v[56:57], v[60:61]
    v_cvt_pk_bf16_f32 v56, v56, v57
    v_min_u32 v56, -2, v56
    """)
    a("global_store_dword v93, v56, s[30:31] sc1", track=False)
    a(f"{lp}:")
    stamp(5)
    a("s_cmp_eq_u32 s60, 1\ns_cbranch_scc1 L_F\ns_cmp_eq_u32 s60, 2\ns_cbranch_scc1 L_D\ns_cmp_eq_u32 s60, 3\ns_cbranch_scc1 L_out")
    a(f"""
    v_lshrrev_b32 v53, 4, v1
    v_and_b32 v54, 7, v1
    v_lshlrev_b32 v54, 8, v54
    v_lshl_add_u32 v54, v53, 4, v54
    s_lshl_b32 s58, s5, 11
    s_add_u32 s58, s58, {OS}
    v_add_u32 v54, s58, v54
    """)
    def oloads():
        for s in range(4): a(f"global_load_dwordx4 v[{64+4*s}:{67+4*s}], v54, s[30:31] offset:{s*64} sc1")
    oloads()
    a(f"""
    v_mul_u32_u24 v55, {2*ESTR}, v53
    v_bfe_u32 v56, v1, 2, 2
    v_lshl_add_u32 v55, v56, 8, v55
    v_and_b32 v57, 3, v1
    v_lshl_add_u32 v55, v57, 3, v55
    v_add_u32 v55, {EXL}, v55
    s_lshl_b32 s58, s3, 1
    v_xor_b32 v57, s58, v56
    v_lshl_add_u32 v58, v57, 5, v55
    v_xor_b32 v57, 1, v57
    v_lshl_add_u32 v59, v57, 5, v55
    v_add_u32 v60, {ESTR}, v58
    v_add_u32 v61, {ESTR}, v59
    """)
    for tn in range(2):
        for s in range(4):
            r = 96 + tn*16 + s*4
            a(f"ds_read_b64_tr_b16 v[{r}:{r+1}], v{58+tn} offset:{s*WSTR}")
            a(f"ds_read_b64_tr_b16 v[{r+2}:{r+3}], v{60+tn} offset:{s*WSTR}")
    a(f"""
    v_and_b32 v56, 1, v53
    v_mul_u32_u24 v56, 10240, v56
    v_lshrrev_b32 v57, 5, v1
    v_lshl_add_u32 v57, v57, 4, v52
    v_lshl_add_u32 v56, v57, 2, v56
    s_lshl_b32 s58, s61, 9
    s_lshl_b32 s59, s3, 7
    s_add_u32 s58, s58, s59
    s_add_u32 s58, s58, {ACC}
    v_add_u32 v62, s58, v56
    v_add_u32 v63, 5120, v62
    s_mul_i32 s58, s5, 5
    s_add_u32 s58, s58, s4
    s_and_b32 s58, s58, 15
    s_lshl_b32 s58, s58, 7
    s_add_u32 s58, s58, {SIG}
    v_lshlrev_b32 v88, 11, v1
    v_add_u32 v88, s58, v88
    v_mov_b32 v89, 1
    s_mov_b32 s66, 0
    s_mov_b32 s68, 0
    s_mov_b32 s69, -1
    """)
    l0, l1 = lab("wp"), lab("wd")
    a(f"{l0}:\ns_waitcnt vmcnt(0)")
    a("v_max3_u32 v56, v64, v65, v66")
    for r in range(67, 79, 2): a(f"v_max3_u32 v56, v56, v{r}, v{r+1}")
    a("v_max_u32 v56, v56, v79")
    a(f"""
    v_cmp_eq_u32 vcc, -1, v56
    s_cbranch_vccz {l1}
    s_add_u32 s66, s66, 1
    s_cmp_gt_u32 s66, {SPIN}
    s_cbranch_scc1 {l1}
    """)
    oloads()
    a(f"s_branch {l0}\n{l1}:")
    stamp(6)
    a("s_waitcnt lgkmcnt(0)")
    for s in range(4):
        for tn in range(2):
            r = 96 + tn*16 + s*4
            c = "0" if s == 0 else f"v[{80+4*tn}:{83+4*tn}]"
            a(f"v_mfma_f32_16x16x32_bf16 v[{80+4*tn}:{83+4*tn}], v[{64+4*s}:{67+4*s}], v[{r}:{r+3}], {c}")
    for r in range(4): a(f"v_cndmask_b32 v{80+r}, v{80+r}, v{84+r}, s[68:69]")
    for r in range(4): a(f"global_atomic_add_f32 v{62 + r//2}, v{80+r}, s[30:31] offset:{(r%2)*2560}")
    a("s_waitcnt vmcnt(0)\ns_barrier")
    stamp(7)
    a("s_cmp_lg_u32 s3, 0\ns_cbranch_scc1 L_out\ns_mov_b64 exec, 0xff")
    a("global_atomic_add v88, v89, s[30:31]")
    a("s_mov_b64 exec, -1\ns_branch L_out")

    def sigpoll():
        l0, l1 = lab("sp"), lab("sd")
        a(f"""
        s_and_b32 s58, s2, 7
        s_lshl_b32 s58, s58, 11
        s_add_u32 s58, s58, {SIG}
        v_lshl_add_u32 v88, v52, 7, s58
        s_mov_b32 s66, 0
        s_cmp_lg_u32 s3, 0
        s_cbranch_scc1 {l1}
        s_mov_b64 exec, 0xffff
        {l0}:
        global_load_dword v89, v88, s[30:31] sc1
        s_add_u32 s66, s66, 1
        s_cmp_gt_u32 s66, {SPIN}
        s_cbranch_scc1 {l1}
        s_waitcnt vmcnt(0)
        v_cmp_ne_u32 vcc, 10, v89
        s_cbranch_vccnz {l0}
        {l1}:
        s_mov_b64 exec, -1
        s_barrier
        """)
    a.vm = []
    a("L_F:\ns_barrier")
    for e in range(nex, 20): exdma(e)
    a(f"""
    v_lshrrev_b32 v53, 4, v1
    v_lshrrev_b32 v54, 5, v1
    v_mul_u32_u24 v55, {2*ESTR}, v54
    v_and_b32 v54, 1, v53
    v_bfe_u32 v56, v1, 2, 2
    v_lshl_add_u32 v56, v54, 3, v56
    v_lshl_add_u32 v55, v56, 6, v55
    v_and_b32 v56, 3, v1
    v_lshl_add_u32 v55, v56, 3, v55
    v_add_u32 v55, s65, v55
    v_xor_b32 v56, 1, v54
    v_lshl_add_u32 v56, v56, 5, v55
    v_lshl_add_u32 v55, v54, 5, v55
    s_mul_i32 s58, s3, 320
    v_add_u32 v90, s58, v90
    """)
    for s in range(5):
        a.vmwait(f"E{4*s+3}")
        for mu in range(2):
            for n in range(2):
                r = 96 + ((s*2 + mu)*2 + n) * 4
                off = (4*s + mu) * ESTR
                a(f"ds_read_b64_tr_b16 v[{r}:{r+1}], v{55+n} offset:{off}")
                a(f"ds_read_b64_tr_b16 v[{r+2}:{r+3}], v{55+n} offset:{off+256}")
    RP = WQL
    a(f"""
    v_and_b32 v57, 7, v1
    v_lshlrev_b32 v57, 7, v57
    v_bfe_u32 v58, v1, 3, 1
    v_lshl_add_u32 v57, v58, 10, v57
    v_lshl_add_u32 v57, v53, 4, v57
    s_lshl_b32 s58, s3, 11
    v_add_u32 v57, s58, v57
    v_lshlrev_b32 v58, 3, v0
    v_lshrrev_b32 v59, 4, v0
    v_lshlrev_b32 v59, 4, v59
    v_bfe_u32 v60, v0, 1, 2
    v_lshl_add_u32 v59, v60, 7, v59
    v_bfe_u32 v60, v0, 3, 1
    v_lshl_add_u32 v59, v60, 3, v59
    v_and_b32 v60, 1, v0
    v_lshl_add_u32 v59, v60, 2, v59
    s_lshl_b32 s58, s61, 9
    s_add_u32 s58, s58, {HH}
    v_add_u32 v59, s58, v59
    s_mov_b32 s68, 0xff00ff00
    s_mov_b32 s69, 0xff00ff00
    """)
    stamp(6)
    sigpoll()
    stamp(7)
    for j in range(5): a(f"global_load_dwordx4 v[{F[4*j]}:{F[4*j+3]}], v92, s[30:31] offset:{j*512} sc1", tag=f"h{j}")
    a.vmwait("h0")
    a(f"v_pk_add_f32 v[82:83], v[{F[0]}:{F[1]}], v[{F[2]}:{F[3]}]")
    for k in range(2, 10):
        if k % 2 == 0: a.vmwait(f"h{k//2}")
        a(f"v_pk_add_f32 v[82:83], v[82:83], v[{F[2*k]}:{F[2*k+1]}]")
    stamp(8)
    a("v_add_f32 v82, v82, v83")
    a("\n".join(red32(82, 83)))
    a("v_mul_f32 v82, 0x3acccccd, v82\nv_mov_b32 v83, v82")
    for k in range(10):
        a(f"v_pk_add_f32 v[{F[2*k]}:{F[2*k+1]}], v[{F[2*k]}:{F[2*k+1]}], v[82:83] neg_lo:[0,1] neg_hi:[0,1]")
    a(f"v_pk_mul_f32 v[84:85], v[{F[0]}:{F[1]}], v[{F[0]}:{F[1]}]")
    for k in range(1, 10):
        a(f"v_pk_fma_f32 v[84:85], v[{F[2*k]}:{F[2*k+1]}], v[{F[2*k]}:{F[2*k+1]}], v[84:85]")
    a("v_add_f32 v84, v84, v85")
    a("\n".join(red32(84, 85)))
    a("v_mov_b32 v85, 0x3727c5ac\nv_fmac_f32 v85, 0x3acccccd, v84\nv_rsq_f32 v84, v85\nv_mov_b32 v85, v84")
    for j in range(5):
        for t in range(2):
            k = 2*j + t
            a(f"v_pk_mul_f32 v[{F[2*k]}:{F[2*k+1]}], v[{F[2*k]}:{F[2*k+1]}], v[84:85]")
        for t in range(2):
            k = 2*j + t
            a(f"v_cvt_pk_bf16_f32 v{40+k}, v{F[2*k]}, v{F[2*k+1]}")
        a(f"ds_write_b64 v91, v[{40+2*j}:{41+2*j}] offset:{XN + j*256}")
    a("s_waitcnt lgkmcnt(0)\ns_barrier")
    for s in range(5): a(f"ds_read_b128 v[{62+4*s}:{65+4*s}], v90 offset:{XN + s*64}")
    for s in range(5):
        a(f"s_waitcnt lgkmcnt({4-s})")
        for mu in range(2):
            for n in range(2):
                r = 96 + ((s*2 + mu)*2 + n) * 4
                d = 20 + (mu*2 + n) * 4
                c = "0" if s == 0 else f"v[{d}:{d+3}]"
                a(f"v_mfma_f32_16x16x32_bf16 v[{d}:{d+3}], v[{r}:{r+3}], v[{62+4*s}:{65+4*s}], {c}")
    for n in range(2):
        for r in range(4): a(f"v_cndmask_b32 v{20+4*n+r}, v{20+4*n+r}, v{28+4*n+r}, s[68:69]")
        a(f"ds_write_b128 v57, v[{20+4*n}:{23+4*n}] offset:{RP + n*64}")
    a("s_waitcnt lgkmcnt(0)\ns_barrier")
    stamp(9)
    a("s_cmp_gt_u32 s3, 1\ns_cbranch_scc1 L_out")
    for w in range(4):
        for mu in range(2):
            r = 62 + (mu*4 + w) * 2
            a(f"ds_read_b64 v[{r}:{r+1}], v58 offset:{RP + w*2048 + mu*1024}")
    a("""
    s_waitcnt lgkmcnt(0)
    v_pk_add_f32 v[62:63], v[62:63], v[64:65]
    v_pk_add_f32 v[66:67], v[66:67], v[68:69]
    v_pk_add_f32 v[70:71], v[70:71], v[72:73]
    v_pk_add_f32 v[74:75], v[74:75], v[76:77]
    v_pk_add_f32 v[62:63], v[62:63], v[66:67]
    v_pk_add_f32 v[70:71], v[70:71], v[74:75]
    v_mul_f32 v62, 0xbfb8aa3b, v62
    v_mul_f32 v63, 0xbfb8aa3b, v63
    v_exp_f32 v62, v62
    v_exp_f32 v63, v63
    v_add_f32 v62, 1.0, v62
    v_add_f32 v63, 1.0, v63
    v_rcp_f32 v62, v62
    v_rcp_f32 v63, v63
    v_pk_mul_f32 v[62:63], v[62:63], v[70:71]
    v_cvt_pk_bf16_f32 v62, v62, v63
    v_min_u32 v62, -2, v62
    global_store_dword v59, v62, s[30:31] sc1
    """)
    stamp(10)
    a("s_branch L_out")
    a.vm = []
    a("L_D:\ns_barrier")
    for e in range(nex, 14): exdma(e)
    a(f"""
    v_lshl_add_u32 v55, v1, 3, s65
    s_add_u32 s52, s30, {HH}
    s_addc_u32 s53, s31, 0
    s_mov_b32 s54, 27648
    s_mov_b32 s55, 0x20000
    v_lshrrev_b32 v53, 4, v1
    v_bfe_u32 v54, v1, 3, 1
    v_and_b32 v56, 7, v1
    v_lshlrev_b32 v57, 9, v54
    v_lshl_add_u32 v57, v53, 7, v57
    v_lshl_add_u32 v57, v56, 4, v57
    s_mul_i32 s58, s3, 7168
    v_add_u32 v57, s58, v57
    v_add_u32 v58, 4096, v57
    v_lshlrev_b32 v59, 6, v52
    v_lshl_add_u32 v59, v53, 4, v59
    s_lshl_b32 s58, s3, 10
    v_add_u32 v59, s58, v59
    v_lshlrev_b32 v60, 3, v1
    v_lshrrev_b32 v61, 3, v1
    v_mul_u32_u24 v61, 1280, v61
    v_lshl_add_u32 v61, v56, 2, v61
    s_lshl_b32 s58, s61, 5
    v_add_u32 v61, s58, v61
    v_lshlrev_b32 v40, 1, v61
    v_add_u32 v40, {ACC}, v40
    s_mov_b32 s68, 0xff00ff00
    s_mov_b32 s69, 0xff00ff00
    """)
    for e in range(14):
        a.vmwait(f"E{e}")
        r = 96 + 4*e
        a(f"ds_read_b64_tr_b16 v[{r}:{r+1}], v55 offset:{e*ESTR}")
        a(f"ds_read_b64_tr_b16 v[{r+2}:{r+3}], v55 offset:{e*ESTR+512}")
    stamp(6)
    sigpoll()
    stamp(7)
    a("global_load_dwordx2 v[42:43], v40, s[30:31] sc1")
    l0, l1 = lab("dp"), lab("dd")
    a(f"s_mov_b32 s66, 0\n{l0}:")
    for p in range(7):
        a(f"buffer_load_dwordx4 v[{160+4*p}:{163+4*p}], v{57 + p//4}, s[52:55], 0 offen offset:{(p%4)*1024} sc1")
    a(f"s_add_u32 s66, s66, 1\ns_cmp_gt_u32 s66, {SPIN}\ns_cbranch_scc1 {l1}")
    for p in range(7):
        a(f"s_waitcnt vmcnt({6-p})")
        if p == 0: a("v_max3_u32 v56, v160, v161, v162\nv_max_u32 v56, v56, v163")
        else: a(f"v_max3_u32 v56, v56, v{160+4*p}, v{161+4*p}\nv_max3_u32 v56, v56, v{162+4*p}, v{163+4*p}")
    a(f"v_cmp_eq_u32 vcc, -1, v56\ns_cbranch_vccnz {l0}\n{l1}:\ns_waitcnt vmcnt(0) lgkmcnt(0)")
    stamp(8)
    for p in range(7):
        for y in range(2):
            r = 96 + 4 * (2*p + y)
            d = 20 + 4*y
            c = "0" if p == 0 else f"v[{d}:{d+3}]"
            a(f"v_mfma_f32_16x16x32_bf16 v[{d}:{d+3}], v[{r}:{r+3}], v[{160+4*p}:{163+4*p}], {c}")
    a("v_cvt_pk_bf16_f32 v42, v42, v43\nv_and_b32 v43, 0xffff0000, v42\nv_lshlrev_b32 v42, 16, v42")
    for r in range(4): a(f"v_cndmask_b32 v{20+r}, v{20+r}, v{24+r}, s[68:69]")
    a(f"ds_write_b128 v59, v[20:23] offset:{RP}")
    a("s_waitcnt lgkmcnt(0)\ns_barrier")
    stamp(9)
    a("s_cmp_lg_u32 s3, 0\ns_cbranch_scc1 L_out")
    for k in range(8): a(f"ds_read_b64 v[{62+2*k}:{63+2*k}], v60 offset:{RP + k*512}")
    a("""
    s_waitcnt lgkmcnt(0)
    v_pk_add_f32 v[62:63], v[62:63], v[64:65]
    v_pk_add_f32 v[66:67], v[66:67], v[68:69]
    v_pk_add_f32 v[70:71], v[70:71], v[72:73]
    v_pk_add_f32 v[74:75], v[74:75], v[76:77]
    v_pk_add_f32 v[62:63], v[62:63], v[66:67]
    v_pk_add_f32 v[70:71], v[70:71], v[74:75]
    v_pk_add_f32 v[62:63], v[62:63], v[70:71]
    v_cvt_pk_bf16_f32 v62, v62, v63
    v_and_b32 v63, 0xffff0000, v62
    v_lshlrev_b32 v62, 16, v62
    v_pk_add_f32 v[62:63], v[62:63], v[42:43]
    v_cvt_pk_bf16_f32 v62, v62, v63
    global_store_dword v61, v62, s[26:27]
    """)
    stamp(10)
    a("L_out:")
    if stamps:
        a("s_waitcnt vmcnt(0)")
        stamp(11)
        a(f"""
        s_getreg_b32 s94, hwreg(HW_REG_XCC_ID)
        s_mov_b32 s96, s60
        s_waitcnt lgkmcnt(0)
        s_lshl_b32 s58, s2, 2
        s_add_u32 s58, s58, s3
        s_lshl_b32 s58, s58, 6
        s_add_u32 s58, s58, {STAMP}
        v_mov_b32 v52, s58
        """)
        for i in range(14):
            a(f"v_mov_b32 v53, s{70+2*i}\nglobal_store_dword v52, v53, s[30:31] offset:{4*i}")
    if amp2 is not None:
        kind, i1, k = amp2
        l0, l1 = lab("amp"), lab("amp")
        a(f"""
        s_cmp_lg_u32 s3, 0
        s_cbranch_scc1 L_end
        s_mov_b64 exec, 1
        v_mov_b32 v52, 0
        s_not_b32 s58, s70
        v_mov_b32 v53, s58
        global_atomic_umax v52, v53, s[28:29] offset:128
        v_mov_b32 v53, s{70+2*i1}
        global_atomic_umax v52, v53, s[28:29] offset:132
        v_and_b32 v53, 0xffffff, v53
        global_atomic_add v52, v53, s[28:29] offset:136
        s_cmp_lg_u32 s60, 2
        s_cbranch_scc1 L_end
        s_cmp_lg_u32 s61, 0
        s_cbranch_scc1 L_end
        s_add_u32 s58, s92, 2000
        {l0}:
        s_memrealtime s[66:67]
        s_waitcnt lgkmcnt(0)
        s_sub_u32 s59, s66, s58
        s_cmp_lt_i32 s59, 0
        s_cbranch_scc1 {l0}
        global_load_dwordx4 v[56:59], v52, s[28:29] offset:128 sc1
        s_waitcnt vmcnt(0)
        v_readfirstlane_b32 s62, v56
        v_readfirstlane_b32 s63, v57
        v_readfirstlane_b32 s64, v58
        s_not_b32 s62, s62
        """)
        if kind == "max": a("s_sub_u32 s59, s63, s62")
        else: a("s_lshr_b32 s64, s64, 8\ns_sub_u32 s59, s64, s62\ns_and_b32 s59, s59, 0xffffff")
        a(f"""
        s_min_u32 s59, s59, 10000
        s_mul_i32 s59, s59, {k}
        s_add_u32 s58, s58, s59
        {l1}:
        s_memrealtime s[66:67]
        s_waitcnt lgkmcnt(0)
        s_sub_u32 s59, s66, s58
        s_cmp_lt_i32 s59, 0
        s_cbranch_scc1 {l1}
        """)
    if amp is not None:
        i0, i1, role, idx, k = amp
        l0 = lab("amp")
        a(f"""
        s_cmp_lg_u32 s60, {role}
        s_cbranch_scc1 L_end
        s_cmp_lg_u32 s61, {idx}
        s_cbranch_scc1 L_end
        s_cmp_lg_u32 s3, 0
        s_cbranch_scc1 L_end
        s_sub_u32 s58, s{70+2*i1}, s{70+2*i0}
        s_min_u32 s58, s58, 10000
        s_mul_i32 s58, s58, {k}
        s_add_u32 s58, s58, s92
        {l0}:
        s_memrealtime s[66:67]
        s_waitcnt lgkmcnt(0)
        s_sub_u32 s59, s66, s58
        s_cmp_lt_i32 s59, 0
        s_cbranch_scc1 {l0}
        """)
    a("L_end:\ns_endpgm")
    a.raw('.section .rodata,"a"')
    a.raw(".p2align 6")
    a.raw(f".amdhsa_kernel {NAME}_kernel")
    a.raw("  .amdhsa_next_free_vgpr 512\n  .amdhsa_next_free_sgpr 102\n  .amdhsa_accum_offset 256")
    a.raw("  .amdhsa_group_segment_fixed_size 0\n  .amdhsa_kernarg_size 96\n  .amdhsa_user_sgpr_count 2")
    a.raw("  .amdhsa_user_sgpr_kernarg_segment_ptr 1\n  .amdhsa_system_sgpr_workgroup_id_x 1")
    a.raw("  .amdhsa_float_denorm_mode_32 3")
    a.raw(".end_amdhsa_kernel")
    return a.text()

if __name__ == "__main__":
    out = sys.argv[1] if len(sys.argv) > 1 else "cdna_kernels/" + NAME + ".s"
    kw = eval("dict(" + (sys.argv[2] if len(sys.argv) > 2 else "") + ")")
    open(out, "w").write(gen(**kw))
```

```python
import sys
sys.path.insert(0, "gen")
from asmlib import Asm
NAME = "sequential_preLN__sliding_block_cached__glu_gated_glu__decode"
HEADER = open("cdna_kernels/" + NAME + ".s.ref").read().split("; Override launch")[0]

QP   = 0x000000
OS   = 0x080000
ACC  = 0x090000
HH   = 0x098000
SIG  = 0x0A0000
QC   = 0x0A8000
STAMP = 0x100000
XN   = 0
SM   = 10752
WQL  = 16384
EXL  = 36864
ESTR = 1088
WSTR = 20 * ESTR
LDS_BYTES = EXL + 4 * WSTR
XSTR = 1312
SPIN = 1 << 16

def gen(W=5, WR=6, stamps=False, nex=8, ex_at=72, ex_every=4, dbgdump=False, qk_at=64, poll_at=52, amp=None, W0=None, W0_until=0, WQK=None, qk_per=4, WE=None, WE_from=128, pv_per=4, early=False, x_at=8, wq_every=2, verbose=False, trace=False, touch=False, amp2=None):
    a = Asm()
    a.raw(HEADER.rstrip())
    a.raw(f"; @launch grid=(256,1,1) block=(256,1,1) lds={LDS_BYTES}")
    a.raw('.amdgcn_target "amdgcn-amd-amdhsa--gfx950"')
    a.raw(".text")
    a.raw(f".globl {NAME}_kernel")
    a.raw(".p2align 8")
    a.raw(f".type {NAME}_kernel,@function")
    a.raw(f"{NAME}_kernel:")
    nstamp = [0]
    def stamp(i, e=False):
        if stamps and (e == early or not (5 <= i <= 10)):
            a(f"s_memrealtime s[{70+2*i}:{71+2*i}]")
    uid = [0]
    def lab(p):
        uid[0] += 1
        return f"L_{p}{uid[0]}"
    a("s_load_dwordx4 s[8:11], s[0:1], 0")
    stamp(0)
    a(f"""
    s_load_dwordx4 s[12:15], s[0:1], 16
    s_load_dwordx16 s[16:31], s[0:1], 32
    s_cmp_ge_u32 s2, 256
    s_cbranch_scc1 L_end
    v_lshlrev_b32 v2, 4, v0
    s_lshl_b32 s7, s2, 20
    s_add_u32 s7, s7, 0xC0000
    s_mov_b32 s34, 0x40000
    s_mov_b32 s35, 0x20000
    s_waitcnt lgkmcnt(0)
    s_add_u32 s32, s10, s7
    s_addc_u32 s33, s11, 0
    """)
    def pro_a():
        if stamps:
            for i in range(1, 14):
                if i != 5: a(f"s_mov_b32 s{70+2*i}, 0")
        a(f"""
        s_add_u32 s36, s12, s7
        s_addc_u32 s37, s13, 0
        v_lshrrev_b32 v52, 6, v0
        v_and_b32 v1, 63, v0
        v_readfirstlane_b32 s3, v52
        s_lshr_b32 s4, s2, 5
        s_and_b32 s5, s2, 31
        v_lshrrev_b32 v52, 5, v0
        v_and_b32 v53, 31, v0
        v_mul_u32_u24 v37, 1280, v52
        v_lshl_add_u32 v37, v53, 3, v37
        s_lshr_b32 s56, s4, 1
        s_and_b32 s57, s4, 1
        s_mul_i32 s58, s56, 160
        s_mul_i32 s59, s3, 40
        s_add_u32 s58, s58, s59
        v_lshrrev_b32 v52, 3, v1
        v_add_u32 v52, s58, v52
        v_lshlrev_b32 v52, 13, v52
        v_and_b32 v53, 7, v1
        v_lshl_add_u32 v52, v53, 4, v52
        s_lshl_b32 s58, s5, 8
        s_lshl_b32 s59, s57, 7
        s_add_u32 s58, s58, s59
        v_add_u32 v36, s58, v52
        s_mul_i32 s7, s3, 5120
        s_add_u32 s7, s7, {WQL}
        s_mov_b32 s38, 0x40000
        s_mov_b32 s39, 0x20000
        s_mov_b32 s42, 5242880
        s_mov_b32 s43, 0x20000
        s_mov_b32 s40, s14
        s_mov_b32 s41, s15
        """)
    def qc_clear():
        l = lab("qc")
        a(f"""
        v_and_b32 v88, 31, v1
        v_lshlrev_b32 v88, 7, v88
        v_add_u32 v88, {QC}, v88
        v_mov_b32 v89, 0
        s_or_b32 s58, s2, s3
        s_cbranch_scc1 {l}
        """)
        a("global_store_dword v88, v89, s[30:31] sc1", track=False)
        a(f"{l}:")
    def qc_flag():
        l = lab("qf")
        a(f"""
        v_mov_b32 v86, 1
        s_or_b32 s58, s2, s3
        s_cbranch_scc1 {l}
        s_mov_b64 exec, 1
        """)
        a("global_store_dword v89, v86, s[28:29] sc1", track=False)
        a(f"s_mov_b64 exec, -1\n{l}:")
    def xloads():
        for j in range(5):
            a(f"global_load_dwordx2 v[{52+2*j}:{53+2*j}], v37, s[8:9] offset:{j*256}", tag="x")
    def wqdma(e):
        a(f"s_add_u32 m0, s7, {e*1024}")
        a(f"s_mov_b32 s58, {e*65536}")
        a(f"buffer_load_dwordx4 v36, s[40:43], s58 offen nt lds", tag="wq")

    def kreg(i):
        return f"v[{96+4*i}:{99+4*i}]" if i < 40 else f"a[{4*(i-40)}:{4*(i-40)+3}]"
    def vreg(i):
        return f"a[{96+4*i}:{99+4*i}]" if i < 40 else f"a[{4*(i-40)}:{4*(i-40)+3}]"
    Wmax = max(W, WR)
    qkr = [999, 999]
    def wins(n):
        w = W
        if W0 and n < W0_until: w = W0
        if WQK and qkr[0] <= n <= qkr[1]: w = WQK
        if WE and n >= WE_from: w = WE
        return w, w + (WR - W)
    def window(n):
        w, wr = wins(n)
        def cnt(k):
            big = [i for i, t in enumerate(a.vm) if t and (t[0] in "KVE" or t == "wq")]
            if len(big) < k: return None
            return len(a.vm) - 1 - big[-k]
        c2 = cnt(w); c1 = cnt(wr)
        if c1 is not None: a(f"s_waitcnt vmcnt({c1})")
        if w != wr and c2 is not None:
            l = lab("w")
            a.raw(f"    s_cbranch_vccnz {l}")
            a.raw(f"    s_waitcnt vmcnt({c2})")
            a.raw(f"{l}:")
    def issue(n):
        i = n % 64
        a(f"s_mov_b32 s6, {i*4096}")
        if n < 64: a(f"buffer_load_dwordx4 {kreg(i)}, v2, s[32:35], s6 offen nt", tag=f"K{i}")
        else:      a(f"buffer_load_dwordx4 {vreg(i)}, v2, s[36:39], s6 offen nt", tag=f"V{i}")
    n0 = W0 or W
    for n in range(n0):
        issue(n)
    stamp(5, True)
    pro_a()
    a(f"""
    s_and_b32 s58, s5, 7
    s_mul_i32 s58, s58, 12
    s_lshr_b32 s59, s5, 3
    s_mul_i32 s59, s59, 3
    s_add_u32 s58, s58, s59
    s_add_u32 s58, s58, s4
    s_sub_u32 s58, s58, 5
    s_sub_u32 s59, s58, 40
    s_cmp_lt_u32 s58, 40
    s_cselect_b32 s60, 2, 1
    s_cselect_b32 s61, s58, s59
    s_cmp_ge_u32 s58, 94
    s_cselect_b32 s60, 3, s60
    s_cmp_lt_u32 s4, 5
    s_cselect_b32 s60, 0, s60
    s_cselect_b32 s61, s4, s61
    s_cselect_b64 vcc, 0, -1
    """)
    lw, lf, ld, lj = lab("rw"), lab("rf"), lab("rd"), lab("rj")
    a(f"""
    s_mov_b32 s47, 0x20000
    s_mov_b32 s51, 0x20000
    s_mov_b32 s64, 0
    s_mul_i32 s65, s3, {WSTR}
    s_add_u32 s65, s65, {EXL}
    s_cmp_eq_u32 s60, 1
    s_cbranch_scc1 {lf}
    s_cmp_eq_u32 s60, 0
    s_cbranch_scc1 {lw}
    s_mov_b32 s44, s24
    s_mov_b32 s45, s25
    s_cmp_eq_u32 s60, 2
    s_cselect_b32 s46, 2211840, 0
    s_mov_b32 s48, s24
    s_mov_b32 s49, s25
    s_mov_b32 s50, s46
    s_mov_b32 s62, 40960
    s_mov_b32 s63, 40960
    s_mul_i32 s58, s3, 448
    v_lshrrev_b32 v62, 1, v1
    v_add_u32 v62, s58, v62
    v_mul_u32_u24 v62, 1280, v62
    v_and_b32 v63, 1, v1
    v_lshl_add_u32 v62, v63, 4, v62
    s_lshl_b32 s58, s61, 5
    v_add_u32 v3, s58, v62
    s_branch {lj}
    {lf}:
    s_mov_b32 s44, s20
    s_mov_b32 s45, s21
    s_mov_b32 s46, 2211840
    s_mov_b32 s48, s22
    s_mov_b32 s49, s23
    s_mov_b32 s50, 2211840
    s_mov_b32 s62, 0
    s_mov_b32 s63, 55296
    s_mul_i32 s58, s3, 160
    v_lshrrev_b32 v62, 2, v1
    v_add_u32 v62, s58, v62
    v_mul_u32_u24 v62, 3456, v62
    v_lshrrev_b32 v63, 4, v1
    v_and_b32 v63, 2, v63
    v_xor_b32 v63, v63, v1
    v_and_b32 v63, 3, v63
    v_lshl_add_u32 v62, v63, 4, v62
    s_lshl_b32 s58, s61, 6
    v_add_u32 v3, s58, v62
    s_branch {lj}
    {lw}:
    s_mov_b32 s44, s16
    s_mov_b32 s45, s17
    s_mov_b32 s46, 5242880
    s_mov_b32 s48, s16
    s_mov_b32 s49, s17
    s_mov_b32 s50, 5242880
    s_mov_b32 s62, 5120
    s_mov_b32 s63, 5120
    s_lshl_b32 s58, s5, 7
    s_lshl_b32 s59, s3, 5
    s_add_u32 s58, s58, s59
    v_lshrrev_b32 v63, 4, v1
    v_add_u32 v62, s58, v63
    v_mul_u32_u24 v62, 1280, v62
    v_lshlrev_b32 v63, 1, v63
    v_xor_b32 v63, v63, v1
    v_and_b32 v63, 15, v63
    v_lshl_add_u32 v62, v63, 4, v62
    s_lshl_b32 s58, s61, 8
    v_add_u32 v3, s58, v62
    {lj}:
    """)
    def exdma(e):
        srd = "s[44:47]" if e % 2 == 0 else "s[48:51]"
        a(f"s_add_u32 m0, s65, {e*ESTR}")
        a(f"buffer_load_dwordx4 v3, {srd}, s64 offen nt lds", tag=f"E{e}")
        a(f"s_add_u32 s64, s64, s{62 + e % 2}")
    if touch:
        a("v_mov_b32 v62, 0\ns_mov_b64 exec, 1")
        a("buffer_load_dword v63, v2, s[36:39], 0 offen", tag="t")
        a("global_load_dword v63, v62, s[8:9]", tag="t")
        a("buffer_load_dword v63, v36, s[40:43], 0 offen", tag="t")
        a("global_load_dword v63, v62, s[30:31]", tag="t")
        a("global_load_dword v63, v62, s[28:29] offset:128", tag="t")
        a("global_load_dword v63, v62, s[26:27]", tag="t")
        a("buffer_load_dword v63, v3, s[44:47], 0 offen", tag="t")
        a("buffer_load_dword v63, v3, s[48:51], 0 offen", tag="t")
        a("s_mov_b64 exec, -1")
    a("""
    v_and_b32 v64, 1, v1
    v_mov_b32 v65, 0xffff
    v_lshlrev_b32 v64, 4, v64
    v_lshlrev_b32 v64, v64, v65
    v_bfe_u32 v65, v1, 1, 2
    """)
    for r in range(4):
        a(f"v_cmp_eq_u32 s[58:59], {r}, v65")
        a(f"v_cndmask_b32 v{4+r}, 0, v64, s[58:59]")
    l1, l2, l3 = lab("c"), lab("c"), lab("c")
    def clears():
      a(f"""
    s_lshl_b32 s58, s5, 3
    s_add_u32 s58, s58, s4
    s_lshl_b32 s58, s58, 8
    s_add_u32 s58, s58, {OS}
    v_lshl_add_u32 v93, v1, 2, s58
    v_mov_b32 v86, -1
    s_cmp_lg_u32 s3, 0
    s_cbranch_scc1 {l1}
    """)
      a("global_store_dword v93, v86, s[30:31] sc1", track=False)
      a(f"""
    {l1}:
    s_lshl_b32 s58, s61, 9
    s_add_u32 s58, s58, {HH}
    v_lshl_add_u32 v87, v0, 2, s58
    s_cmp_lg_u32 s60, 1
    s_cbranch_scc1 {l2}
    s_cmp_gt_u32 s3, 1
    s_cbranch_scc1 {l2}
    """)
      a("global_store_dword v87, v86, s[30:31] sc1", track=False)
      a(f"""
    {l2}:
    s_lshl_b32 s58, s2, 10
    s_add_u32 s58, s58, {SIG}
    v_lshl_add_u32 v87, v0, 2, s58
    v_mov_b32 v86, 0
    s_cmp_ge_u32 s2, 16
    s_cbranch_scc1 {l3}
    """)
      a("global_store_dword v87, v86, s[30:31] sc1", track=False)
      a(f"{l3}:")

    F = list(range(62, 82))
    def red32(r, t, op="v_add_f32"):
        o = []
        for k in (8, 4, 2, 1):
            o.append(f"{op}_dpp v{r}, v{r}, v{r} row_ror:{k} row_mask:0xf bank_mask:0xf")
        o += [f"v_mov_b32 v{t}, v{r}", f"v_permlane16_swap_b32 v{r}, v{t}", f"{op} v{r}, v{r}, v{t}"]
        return o
    def rbf(r):
        return [f"v_cvt_pk_bf16_f32 v{r}, v{r}, v{r}", f"v_lshlrev_b32 v{r}, 16, v{r}"]
    chunks = {}
    def at(n, f): chunks.setdefault(n, []).append(f)

    def ln1_a():
        stamp(6, True)
        a.vmwait("x")
        stamp(7, True)
        for j in range(5):
            for t in range(2):
                a(f"v_lshlrev_b32 v{F[4*j+2*t]}, 16, v{52+2*j+t}")
                a(f"v_and_b32 v{F[4*j+2*t+1]}, 0xffff0000, v{52+2*j+t}")
        l = lab("ai")
        a(f"""
        v_lshl_add_u32 v92, v37, 1, 0
        v_add_u32 v92, {ACC}, v92
        s_cmp_lg_u32 s2, 0
        s_cbranch_scc1 {l}
        """)
        for j in range(5):
            a(f"global_store_dwordx4 v92, v[{F[4*j]}:{F[4*j+3]}], s[30:31] offset:{j*512} sc1", track=False)
        a(f"{l}:")
    def ln1_a2():
        a(f"v_pk_add_f32 v[82:83], v[{F[0]}:{F[1]}], v[{F[2]}:{F[3]}]")
        for k in range(2, 10):
            a(f"v_pk_add_f32 v[82:83], v[82:83], v[{F[2*k]}:{F[2*k+1]}]")
        a("v_add_f32 v82, v82, v83")
        a("\n".join(red32(82, 83)))
        a("v_mul_f32 v82, 0x3acccccd, v82")
    def ln1_b():
        a("v_mov_b32 v84, 0\nv_mov_b32 v85, 0\nv_mov_b32 v83, v82")
        for k in range(10):
            a(f"v_pk_add_f32 v[86:87], v[{F[2*k]}:{F[2*k+1]}], v[82:83] neg_lo:[0,1] neg_hi:[0,1]")
            a(f"v_pk_fma_f32 v[84:85], v[86:87], v[86:87], v[84:85]")
    def ln1_b2():
        a("v_add_f32 v84, v84, v85")
        a("\n".join(red32(84, 85)))
        a("v_mul_f32 v84, 0x3acccccd, v84")
        a("\n".join(rbf(84)))
        a("v_add_f32 v84, 0x3727c5ac, v84")
        a("\n".join(rbf(84)))
        a("v_sqrt_f32 v84, v84")
        a("\n".join(rbf(84)))
        a("v_rcp_f32 v84, v84")
        a("\n".join(rbf(82)))
        a("v_mov_b32 v83, v82\nv_mov_b32 v85, v84")
    def ln1_c(js):
        def f():
            for j in js:
                for t in range(2):
                    k = 2 * j + t
                    x0, x1 = F[2*k], F[2*k+1]
                    a(f"v_pk_add_f32 v[{x0}:{x1}], v[{x0}:{x1}], v[82:83] neg_lo:[0,1] neg_hi:[0,1]")
                    a(f"v_cvt_pk_bf16_f32 v86, v{x0}, v{x1}")
                    a(f"v_lshlrev_b32 v{x0}, 16, v86")
                    a(f"v_and_b32 v{x1}, 0xffff0000, v86")
                    a(f"v_pk_mul_f32 v[{x0}:{x1}], v[{x0}:{x1}], v[84:85]")
                    a(f"v_cvt_pk_bf16_f32 v{52+k}, v{x0}, v{x1}")
                a(f"ds_write_b64 v91, v[{52+2*j}:{53+2*j}] offset:{XN + j*256}")
        return f
    def ln1_pre():
        a(f"""
        v_lshrrev_b32 v90, 5, v0
        v_mul_u32_u24 v91, {XSTR}, v90
        v_and_b32 v90, 31, v0
        v_lshl_add_u32 v91, v90, 3, v91
        """)
    def qgemm_0():
        a(f"""
        v_lshrrev_b32 v54, 4, v1
        v_bfe_u32 v55, v1, 2, 2
        v_lshl_add_u32 v55, v54, 3, v55
        v_lshlrev_b32 v52, 7, v55
        v_and_b32 v55, 3, v1
        v_lshl_add_u32 v52, v55, 3, v52
        s_lshl_b32 s58, s3, 5
        s_add_u32 s58, s58, {WQL}
        v_add_u32 v52, s58, v52
        v_and_b32 v55, 7, v1
        v_mul_u32_u24 v90, {XSTR}, v55
        v_lshl_add_u32 v90, v54, 4, v90
        s_mul_i32 s58, s56, 320
        v_add_u32 v53, s58, v90
        """)
    def qgemm_a():
        a.vmwait("wq", "lgkmcnt(0)")
        a("s_barrier")
        stamp(8, True)
        for s in range(5):
            a(f"ds_read_b64_tr_b16 v[{12+4*s}:{13+4*s}], v52 offset:{s*4096}")
            a(f"ds_read_b64_tr_b16 v[{14+4*s}:{15+4*s}], v52 offset:{s*4096+512}")
            a(f"ds_read_b128 v[{32+4*s}:{35+4*s}], v53 offset:{XN + s*64}")
        a(f"""
        v_lshlrev_b32 v55, 11, v55
        v_lshl_add_u32 v54, v54, 4, v55
        s_lshl_b32 s58, s5, 14
        s_lshl_b32 s59, s4, 8
        s_add_u32 s58, s58, s59
        s_lshl_b32 s59, s3, 6
        s_add_u32 s58, s58, s59
        s_add_u32 s58, s58, {QP}
        v_add_u32 v54, s58, v54
        """)
    def qgemm_b():
        a("s_waitcnt lgkmcnt(0)")
        for s in range(5):
            c = "0" if s == 0 else "v[56:59]"
            a(f"v_mfma_f32_16x16x32_bf16 v[56:59], v[{12+4*s}:{15+4*s}], v[{32+4*s}:{35+4*s}], {c}")
        l = lab("fl")
        a(f"s_cmp_lg_u32 s3, 0\ns_cbranch_scc1 {l}")
        a("global_load_dword v60, v89, s[28:29] sc1", track=False)
        a(f"{l}:")
        a("s_mov_b32 exec_lo, 0x00ff00ff\ns_mov_b32 exec_hi, 0x00ff00ff\ns_nop 3")
        a("global_store_dwordx4 v54, v[56:59], s[30:31] sc1", tag="qst")
        a("s_mov_b64 exec, -1")
        stamp(9, True)
    def qsignal():
        a.vmwait("qst")
        a("s_barrier")
        l, l0, l1 = lab("qs"), lab("qs"), lab("qs")
        a(f"""
        s_lshl_b32 s58, s5, 7
        s_add_u32 s58, s58, {QC}
        v_mov_b32 v52, s58
        v_mov_b32 v53, 1
        s_cmp_lg_u32 s3, 0
        s_cbranch_scc1 {l}
        s_mov_b64 exec, 1
        s_mov_b32 s57, 0
        {l0}:
        v_readfirstlane_b32 s58, v60
        s_cmp_lg_u32 s58, 0
        s_cbranch_scc1 {l1}
        s_add_u32 s57, s57, 1
        s_cmp_gt_u32 s57, {SPIN}
        s_cbranch_scc1 {l1}
        s_sleep 4
        """)
        a("global_load_dword v60, v89, s[28:29] sc1", track=False)
        a.raw("    s_waitcnt vmcnt(0)")
        a(f"s_branch {l0}\n{l1}:")
        a("global_atomic_add v52, v53, s[30:31]", track=False)
        a(f"s_mov_b64 exec, -1\n{l}:")
        stamp(1)
    def qpoll_a():
        a("global_load_dword v53, v52, s[30:31] sc1", tag="poll")
    def gpoll_a():
        a("v_mov_b32 v52, v88")
        a("global_load_dword v53, v52, s[30:31] sc1", tag="poll")
    def pollchk(allh):
        a.vmwait("poll")
        l0, l1 = lab("pl"), lab("pd")
        chk = "s_cmp_eq_u32 s58, 0"
        a(f"""
        s_mov_b32 s57, 0
        {l0}:
        v_cmp_gt_u32 s[58:59], 8, v53
        {chk}
        s_cbranch_scc1 {l1}
        s_add_u32 s57, s57, 1
        s_cmp_gt_u32 s57, {SPIN}
        s_cbranch_scc1 {l1}
        s_sleep 8
        """)
        a("global_load_dword v53, v52, s[30:31] sc1", track=False)
        a.raw("    s_waitcnt vmcnt(0)")
        a(f"s_branch {l0}\n{l1}:")
    def qpoll_b():
        pollchk(False)
        stamp(2)
        a(f"""
        v_lshrrev_b32 v52, 4, v1
        v_lshlrev_b32 v52, 9, v52
        v_and_b32 v53, 15, v1
        v_lshl_add_u32 v52, v53, 5, v52
        s_lshl_b32 s58, s5, 14
        s_lshl_b32 s59, s4, 11
        s_add_u32 s58, s58, s59
        s_add_u32 s58, s58, {QP}
        v_add_u32 v52, s58, v52
        """)
        a("global_load_dwordx4 v[56:59], v52, s[30:31] sc1", tag="qg")
        a("global_load_dwordx4 v[60:63], v52, s[30:31] offset:16 sc1", tag="qg")
    def qfin0(sw):
        a.vmwait("qg")
        for r in range(8): a(f"v_mov_b32 v{64+r}, v{56+r}")
        for r in range(8): a(f"{sw} v{56+r}, v{64+r}")
        for r in range(8): a(f"v_add_f32 v{56+r}, v{56+r}, v{64+r}")
    def qfin():
        qfin0("v_permlane16_swap_b32")
        for r in range(4): a(f"v_cvt_pk_bf16_f32 v{8+r}, v{56+2*r}, v{57+2*r}")
        a("s_mov_b32 s66, 0xaaaaaaaa\ns_mov_b32 s67, 0xaaaaaaaa\ns_mov_b32 s68, 0xcccccccc\ns_mov_b32 s69, 0xcccccccc")
    P = list(range(36, 52))
    def qk(i0, cnt):
        def f():
            a.vmwait(f"K{i0+cnt-1}")
            srcs = []
            for i in range(i0, i0 + cnt):
                t = i % 16
                if i < 40:
                    src = [96 + 4*i + r for r in range(4)]
                else:
                    base = 28 + 4 * (i % 2)
                    src = [base + r for r in range(4)]
                    for r in range(4): a(f"v_accvgpr_read_b32 v{base+r}, a{4*(i-40)+r}")
                srcs.append((t, src))
                a(f"v_mov_b32 v{P[t]}, 0")
                if len(srcs) == 2:
                    for r in range(4):
                        for (t2, s2) in srcs: a(f"v_dot2c_f32_bf16 v{P[t2]}, v{s2[r]}, v{8+r}")
                    srcs.clear()
        return f
    def qkred(m):
        def f():
            if True:
                for t in range(8):
                    a(f"v_add_f32_dpp v{P[t]}, v{P[t]}, v{P[t]} row_ror:8 row_mask:0xf bank_mask:0x3")
                for t in range(8):
                    a(f"v_add_f32_dpp v{P[t]}, v{P[t+8]}, v{P[t+8]} row_ror:8 row_mask:0xf bank_mask:0xc")
                for t in range(4):
                    a(f"v_add_f32_dpp v{P[t]}, v{P[t]}, v{P[t]} row_ror:12 row_mask:0xf bank_mask:0x5")
                for t in range(4):
                    a(f"v_add_f32_dpp v{P[t]}, v{P[t+4]}, v{P[t+4]} row_ror:4 row_mask:0xf bank_mask:0xa")
                for t in range(4):
                    a(f"v_add_f32_dpp v{P[t]}, v{P[t]}, v{P[t]} quad_perm:[1,0,3,2] row_mask:0xf bank_mask:0xf")
                for t in range(4):
                    a(f"v_add_f32_dpp v{P[t]}, v{P[t]}, v{P[t]} quad_perm:[2,3,0,1] row_mask:0xf bank_mask:0xf")
                a(f"v_cndmask_b32 v{P[0]}, v{P[0]}, v{P[1]}, s[66:67]")
                a(f"v_cndmask_b32 v{P[2]}, v{P[2]}, v{P[3]}, s[66:67]")
                a(f"v_cndmask_b32 v{12+m}, v{P[0]}, v{P[2]}, s[68:69]")
        return f
    def red64(r, t, op):
        o = red32(r, t, op)
        o += [f"v_mov_b32 v{t}, v{r}", f"v_permlane32_swap_b32 v{r}, v{t}", f"{op} v{r}, v{r}, v{t}"]
        return o
    def softmax_a():
        a("v_cvt_pk_bf16_f32 v52, v12, v13\nv_cvt_pk_bf16_f32 v53, v14, v15")
        a("v_lshlrev_b32 v12, 16, v52\nv_and_b32 v13, 0xffff0000, v52\nv_lshlrev_b32 v14, 16, v53\nv_and_b32 v15, 0xffff0000, v53")
        for m in range(4): a(f"v_mul_f32 v{12+m}, 0x3db504f3, v{12+m}")
        a("v_cvt_pk_bf16_f32 v52, v12, v13\nv_cvt_pk_bf16_f32 v53, v14, v15")
        a("v_lshlrev_b32 v12, 16, v52\nv_and_b32 v13, 0xffff0000, v52\nv_lshlrev_b32 v14, 16, v53\nv_and_b32 v15, 0xffff0000, v53")
        if dbgdump:
            a(f"s_lshl_b32 s58, s2, 12\ns_lshl_b32 s59, s3, 10\ns_add_u32 s58, s58, s59\ns_add_u32 s58, s58, 0x200000\nv_lshl_add_u32 v54, v1, 2, s58")
            for m in range(4): a(f"global_store_dword v54, v{12+m}, s[30:31] offset:{m*256}", track=False)
        a("v_max_f32 v52, v12, v13\nv_max3_f32 v52, v52, v14, v15")
        a("\n".join(red64(52, 53, "v_max_f32")))
        for m in range(4): a(f"v_sub_f32 v{12+m}, v{12+m}, v52")
        for m in range(4): a(f"v_mul_f32 v{12+m}, 0x3fb8aa3b, v{12+m}")
        for m in range(4): a(f"v_exp_f32 v{12+m}, v{12+m}")
        a("v_add_f32 v53, v12, v13\nv_add_f32 v54, v14, v15\nv_add_f32 v53, v53, v54")
        a("\n".join(red64(53, 54, "v_add_f32")))
        a(f"s_lshl_b32 s58, s3, 3\nv_mov_b32 v54, s58\nds_write_b64 v54, v[52:53] offset:{SM}")
    def softmax_b():
        a("s_waitcnt lgkmcnt(0)\ns_barrier\nv_mov_b32 v54, 0")
        a(f"ds_read_b128 v[56:59], v54 offset:{SM}\nds_read_b128 v[60:63], v54 offset:{SM+16}")
        a("s_waitcnt lgkmcnt(0)")
        a("v_max_f32 v54, v56, v58\nv_max3_f32 v54, v54, v60, v62")
        for r in (56, 58, 60, 62, 52): a(f"v_sub_f32 v{r}, v{r}, v54")
        for r in (56, 58, 60, 62, 52): a(f"v_mul_f32 v{r}, 0x3fb8aa3b, v{r}")
        for r in (56, 58, 60, 62, 52): a(f"v_exp_f32 v{r}, v{r}")
        a("v_mul_f32 v54, v56, v57\nv_fmac_f32 v54, v58, v59\nv_fmac_f32 v54, v60, v61\nv_fmac_f32 v54, v62, v63")
        a("v_rcp_f32 v54, v54\nv_mul_f32 v52, v52, v54")
        for m in range(4): a(f"v_mul_f32 v{12+m}, v{12+m}, v52")
        for m in range(4): a(f"v_cvt_pk_bf16_f32 v{12+m}, v{12+m}, v{12+m}")
        build(0)
        stamp(3)
    def build(i):
        b = 20 + 4 * (i % 2)
        for r in range(4):
            a(f"v_and_b32_dpp v{b+r}, v{12 + i//16}, v{4+r} row_newbcast:{i%16} row_mask:0xf bank_mask:0xf")
    def pv(i):
        if i + 1 < 64: build(i + 1)
        a.vmwait(f"V{i}")
        b = 20 + 4 * (i % 2)
        c = "0" if i == 0 else "v[16:19]"
        a(f"v_mfma_f32_16x16x32_bf16 v[16:19], v[{b}:{b+3}], {vreg(i)}, {c}")

    xa = max(x_at, n0)
    wqs = [xa + 1 + wq_every * e for e in range(5)]
    Q = [(xa, None, lambda: (qc_clear(), xloads(), ln1_pre())), (0, "x", lambda: (qc_flag(), ln1_a()))]
    Q += [(0, None, f) for f in (ln1_a2, ln1_b, ln1_b2, ln1_c([0]), ln1_c([1, 2]), ln1_c([3, 4]), clears, qgemm_0)]
    Q += [(wqs[-1] + 1, "wq", qgemm_a), (0, None, qgemm_b), (0, "qst", qsignal)]
    Q += [(poll_at, None, qpoll_a), (0, "poll", qpoll_b), (0, "qg", lambda: qfin0("v_permlane32_swap_b32")), (0, None, qfin)]
    kdone = [0]
    def mkqk(i):
        f = qk(i, qk_per)
        def g():
            if i == 0: qkr[0] = cur[0]
            f(); kdone[0] = i + qk_per
        return g
    for i in range(0, 64, qk_per):
        Q.append((max(qk_at, i + qk_per), f"K{i+qk_per-1}", mkqk(i)))
        if (i + qk_per) % 16 == 0: Q.append((0, None, qkred((i + qk_per) // 16 - 1)))
    smb = [999]
    def smb_f():
        softmax_b(); smb[0] = cur[0]; qkr[1] = cur[0] + 1
    Q += [(0, None, softmax_a), (0, None, smb_f), (0, None, gpoll_a), (0, "poll", lambda: pollchk(True))]
    pvdone = [0]
    exi = 0
    cur = [0]
    log = []
    for n in range(n0, 128):
        cur[0] = n
        window(n)
        if trace:
            if n > n0:
                a("s_waitcnt lgkmcnt(0)")
                a(f"v_writelane_b32 v{94 + (n-1)//64}, s98, {(n-1)%64}")
            a("s_memrealtime s[98:99]")
        assert n < 104 or kdone[0] > n - 64
        issue(n)
        if n in wqs:
            window(n); wqdma(wqs.index(n))
        if n >= ex_at and (n - ex_at) % ex_every == 0 and exi < nex:
            window(n); exdma(exi); exi += 1
        if Q and Q[0][0] <= n and (Q[0][1] is None or Q[0][1] not in a.vm):
            f = Q.pop(0)[2]; f(); log.append((n, getattr(f, "__name__", "?")))
        if n == 30: stamp(10, True)
        if n > smb[0]:
            c = 0
            while pvdone[0] <= n - 64 and f"V{pvdone[0]}" not in a.vm and c < pv_per:
                pv(pvdone[0]); pvdone[0] += 1; c += 1
    assert not Q
    if verbose: print(log, "pv backlog", 64 - pvdone[0])
    assert exi == nex
    if trace:
        a(f"""
        s_lshl_b32 s58, s2, 11
        s_lshl_b32 s59, s3, 9
        s_add_u32 s58, s58, s59
        s_add_u32 s58, s58, 0x300000
        v_lshl_add_u32 v52, v1, 2, s58
        """)
        a("global_store_dword v52, v94, s[30:31]", track=False)
        a("global_store_dword v52, v95, s[30:31] offset:256", track=False)
    a(f"""
    v_and_b32 v52, 15, v1
    v_bfe_u32 v53, v1, 4, 1
    v_lshlrev_b32 v54, 5, v52
    v_lshl_add_u32 v54, v53, 4, v54
    s_lshl_b32 s58, s3, 9
    v_add_u32 v54, s58, v54
    v_lshlrev_b32 v55, 3, v1
    """)
    while pvdone[0] < 64:
        pv(pvdone[0]); pvdone[0] += 1
    stamp(4)
    OP = SM + 64
    a(f"ds_write_b128 v54, v[16:19] offset:{OP}")
    a("s_waitcnt vmcnt(0) lgkmcnt(0)\ns_barrier")
    lp = lab("pub")
    a(f"s_cmp_lg_u32 s3, 0\ns_cbranch_scc1 {lp}")
    for w in range(4): a(f"ds_read_b64 v[{56+2*w}:{57+2*w}], v55 offset:{OP + w*512}")
    a("""
    s_waitcnt lgkmcnt(0)
    v_pk_add_f32 v[56:57], v[56:57], v[58:59]
    v_pk_add_f32 v[60:61], v[60:61], v[62:63]
    v_pk_add_f32 v[56:57], v[56:57], v[60:61]
    v_cvt_pk_bf16_f32 v56, v56, v57
    v_min_u32 v56, -2, v56
    """)
    a("global_store_dword v93, v56, s[30:31] sc1", track=False)
    a(f"{lp}:")
    stamp(5)
    a("s_cmp_eq_u32 s60, 1\ns_cbranch_scc1 L_F\ns_cmp_eq_u32 s60, 2\ns_cbranch_scc1 L_D\ns_cmp_eq_u32 s60, 3\ns_cbranch_scc1 L_out")
    a(f"""
    v_lshrrev_b32 v53, 4, v1
    v_and_b32 v54, 7, v1
    v_lshlrev_b32 v54, 8, v54
    v_lshl_add_u32 v54, v53, 4, v54
    s_lshl_b32 s58, s5, 11
    s_add_u32 s58, s58, {OS}
    v_add_u32 v54, s58, v54
    """)
    def oloads():
        for s in range(4): a(f"global_load_dwordx4 v[{64+4*s}:{67+4*s}], v54, s[30:31] offset:{s*64} sc1")
    oloads()
    a(f"""
    v_mul_u32_u24 v55, {2*ESTR}, v53
    v_bfe_u32 v56, v1, 2, 2
    v_lshl_add_u32 v55, v56, 8, v55
    v_and_b32 v57, 3, v1
    v_lshl_add_u32 v55, v57, 3, v55
    v_add_u32 v55, {EXL}, v55
    s_lshl_b32 s58, s3, 1
    v_xor_b32 v57, s58, v56
    v_lshl_add_u32 v58, v57, 5, v55
    v_xor_b32 v57, 1, v57
    v_lshl_add_u32 v59, v57, 5, v55
    v_add_u32 v60, {ESTR}, v58
    v_add_u32 v61, {ESTR}, v59
    """)
    for tn in range(2):
        for s in range(4):
            r = 96 + tn*16 + s*4
            a(f"ds_read_b64_tr_b16 v[{r}:{r+1}], v{58+tn} offset:{s*WSTR}")
            a(f"ds_read_b64_tr_b16 v[{r+2}:{r+3}], v{60+tn} offset:{s*WSTR}")
    a(f"""
    v_and_b32 v56, 1, v53
    v_mul_u32_u24 v56, 10240, v56
    v_lshrrev_b32 v57, 5, v1
    v_lshl_add_u32 v57, v57, 4, v52
    v_lshl_add_u32 v56, v57, 2, v56
    s_lshl_b32 s58, s61, 9
    s_lshl_b32 s59, s3, 7
    s_add_u32 s58, s58, s59
    s_add_u32 s58, s58, {ACC}
    v_add_u32 v62, s58, v56
    v_add_u32 v63, 5120, v62
    s_mul_i32 s58, s5, 5
    s_add_u32 s58, s58, s4
    s_and_b32 s58, s58, 15
    s_lshl_b32 s58, s58, 7
    s_add_u32 s58, s58, {SIG}
    v_lshlrev_b32 v88, 11, v1
    v_add_u32 v88, s58, v88
    v_mov_b32 v89, 1
    s_mov_b32 s66, 0
    s_mov_b32 s68, 0
    s_mov_b32 s69, -1
    """)
    l0, l1 = lab("wp"), lab("wd")
    a(f"{l0}:\ns_waitcnt vmcnt(0)")
    a("v_max3_u32 v56, v64, v65, v66")
    for r in range(67, 79, 2): a(f"v_max3_u32 v56, v56, v{r}, v{r+1}")
    a("v_max_u32 v56, v56, v79")
    a(f"""
    v_cmp_eq_u32 vcc, -1, v56
    s_cbranch_vccz {l1}
    s_add_u32 s66, s66, 1
    s_cmp_gt_u32 s66, {SPIN}
    s_cbranch_scc1 {l1}
    """)
    oloads()
    a(f"s_branch {l0}\n{l1}:")
    stamp(6)
    a("s_waitcnt lgkmcnt(0)")
    for s in range(4):
        for tn in range(2):
            r = 96 + tn*16 + s*4
            c = "0" if s == 0 else f"v[{80+4*tn}:{83+4*tn}]"
            a(f"v_mfma_f32_16x16x32_bf16 v[{80+4*tn}:{83+4*tn}], v[{64+4*s}:{67+4*s}], v[{r}:{r+3}], {c}")
    for r in range(4): a(f"v_cndmask_b32 v{80+r}, v{80+r}, v{84+r}, s[68:69]")
    for r in range(4): a(f"global_atomic_add_f32 v{62 + r//2}, v{80+r}, s[30:31] offset:{(r%2)*2560}")
    a("s_waitcnt vmcnt(0)\ns_barrier")
    stamp(7)
    a("s_cmp_lg_u32 s3, 0\ns_cbranch_scc1 L_out\ns_mov_b64 exec, 0xff")
    a("global_atomic_add v88, v89, s[30:31]")
    a("s_mov_b64 exec, -1\ns_branch L_out")

    def sigpoll():
        l0, l1 = lab("sp"), lab("sd")
        a(f"""
        s_and_b32 s58, s2, 7
        s_lshl_b32 s58, s58, 11
        s_add_u32 s58, s58, {SIG}
        v_lshl_add_u32 v88, v52, 7, s58
        s_mov_b32 s66, 0
        s_cmp_lg_u32 s3, 0
        s_cbranch_scc1 {l1}
        s_mov_b64 exec, 0xffff
        {l0}:
        global_load_dword v89, v88, s[30:31] sc1
        s_add_u32 s66, s66, 1
        s_cmp_gt_u32 s66, {SPIN}
        s_cbranch_scc1 {l1}
        s_waitcnt vmcnt(0)
        v_cmp_ne_u32 vcc, 10, v89
        s_cbranch_vccnz {l0}
        {l1}:
        s_mov_b64 exec, -1
        s_barrier
        """)
    a.vm = []
    a("L_F:\ns_barrier")
    for e in range(nex, 20): exdma(e)
    a(f"""
    v_lshrrev_b32 v53, 4, v1
    v_lshrrev_b32 v54, 5, v1
    v_mul_u32_u24 v55, {2*ESTR}, v54
    v_and_b32 v54, 1, v53
    v_bfe_u32 v56, v1, 2, 2
    v_lshl_add_u32 v56, v54, 3, v56
    v_lshl_add_u32 v55, v56, 6, v55
    v_and_b32 v56, 3, v1
    v_lshl_add_u32 v55, v56, 3, v55
    v_add_u32 v55, s65, v55
    v_xor_b32 v56, 1, v54
    v_lshl_add_u32 v56, v56, 5, v55
    v_lshl_add_u32 v55, v54, 5, v55
    s_mul_i32 s58, s3, 320
    v_add_u32 v90, s58, v90
    """)
    for s in range(5):
        a.vmwait(f"E{4*s+3}")
        for mu in range(2):
            for n in range(2):
                r = 96 + ((s*2 + mu)*2 + n) * 4
                off = (4*s + mu) * ESTR
                a(f"ds_read_b64_tr_b16 v[{r}:{r+1}], v{55+n} offset:{off}")
                a(f"ds_read_b64_tr_b16 v[{r+2}:{r+3}], v{55+n} offset:{off+256}")
    RP = WQL
    a(f"""
    v_and_b32 v57, 7, v1
    v_lshlrev_b32 v57, 7, v57
    v_bfe_u32 v58, v1, 3, 1
    v_lshl_add_u32 v57, v58, 10, v57
    v_lshl_add_u32 v57, v53, 4, v57
    s_lshl_b32 s58, s3, 11
    v_add_u32 v57, s58, v57
    v_lshlrev_b32 v58, 3, v0
    v_lshrrev_b32 v59, 4, v0
    v_lshlrev_b32 v59, 4, v59
    v_bfe_u32 v60, v0, 1, 2
    v_lshl_add_u32 v59, v60, 7, v59
    v_bfe_u32 v60, v0, 3, 1
    v_lshl_add_u32 v59, v60, 3, v59
    v_and_b32 v60, 1, v0
    v_lshl_add_u32 v59, v60, 2, v59
    s_lshl_b32 s58, s61, 9
    s_add_u32 s58, s58, {HH}
    v_add_u32 v59, s58, v59
    s_mov_b32 s68, 0xff00ff00
    s_mov_b32 s69, 0xff00ff00
    """)
    stamp(6)
    sigpoll()
    stamp(7)
    for j in range(5): a(f"global_load_dwordx4 v[{F[4*j]}:{F[4*j+3]}], v92, s[30:31] offset:{j*512} sc1", tag=f"h{j}")
    a.vmwait("h0")
    a(f"v_pk_add_f32 v[82:83], v[{F[0]}:{F[1]}], v[{F[2]}:{F[3]}]")
    for k in range(2, 10):
        if k % 2 == 0: a.vmwait(f"h{k//2}")
        a(f"v_pk_add_f32 v[82:83], v[82:83], v[{F[2*k]}:{F[2*k+1]}]")
    stamp(8)
    a("v_add_f32 v82, v82, v83")
    a("\n".join(red32(82, 83)))
    a("v_mul_f32 v82, 0x3acccccd, v82\nv_mov_b32 v83, v82")
    for k in range(10):
        a(f"v_pk_add_f32 v[{F[2*k]}:{F[2*k+1]}], v[{F[2*k]}:{F[2*k+1]}], v[82:83] neg_lo:[0,1] neg_hi:[0,1]")
    a(f"v_pk_mul_f32 v[84:85], v[{F[0]}:{F[1]}], v[{F[0]}:{F[1]}]")
    for k in range(1, 10):
        a(f"v_pk_fma_f32 v[84:85], v[{F[2*k]}:{F[2*k+1]}], v[{F[2*k]}:{F[2*k+1]}], v[84:85]")
    a("v_add_f32 v84, v84, v85")
    a("\n".join(red32(84, 85)))
    a("v_mov_b32 v85, 0x3727c5ac\nv_fmac_f32 v85, 0x3acccccd, v84\nv_rsq_f32 v84, v85\nv_mov_b32 v85, v84")
    for j in range(5):
        for t in range(2):
            k = 2*j + t
            a(f"v_pk_mul_f32 v[{F[2*k]}:{F[2*k+1]}], v[{F[2*k]}:{F[2*k+1]}], v[84:85]")
        for t in range(2):
            k = 2*j + t
            a(f"v_cvt_pk_bf16_f32 v{40+k}, v{F[2*k]}, v{F[2*k+1]}")
        a(f"ds_write_b64 v91, v[{40+2*j}:{41+2*j}] offset:{XN + j*256}")
    a("s_waitcnt lgkmcnt(0)\ns_barrier")
    for s in range(5): a(f"ds_read_b128 v[{62+4*s}:{65+4*s}], v90 offset:{XN + s*64}")
    for s in range(5):
        a(f"s_waitcnt lgkmcnt({4-s})")
        for mu in range(2):
            for n in range(2):
                r = 96 + ((s*2 + mu)*2 + n) * 4
                d = 20 + (mu*2 + n) * 4
                c = "0" if s == 0 else f"v[{d}:{d+3}]"
                a(f"v_mfma_f32_16x16x32_bf16 v[{d}:{d+3}], v[{r}:{r+3}], v[{62+4*s}:{65+4*s}], {c}")
    for n in range(2):
        for r in range(4): a(f"v_cndmask_b32 v{20+4*n+r}, v{20+4*n+r}, v{28+4*n+r}, s[68:69]")
        a(f"ds_write_b128 v57, v[{20+4*n}:{23+4*n}] offset:{RP + n*64}")
    a("s_waitcnt lgkmcnt(0)\ns_barrier")
    stamp(9)
    a("s_cmp_gt_u32 s3, 1\ns_cbranch_scc1 L_out")
    for w in range(4):
        for mu in range(2):
            r = 62 + (mu*4 + w) * 2
            a(f"ds_read_b64 v[{r}:{r+1}], v58 offset:{RP + w*2048 + mu*1024}")
    a("""
    s_waitcnt lgkmcnt(0)
    v_pk_add_f32 v[62:63], v[62:63], v[64:65]
    v_pk_add_f32 v[66:67], v[66:67], v[68:69]
    v_pk_add_f32 v[70:71], v[70:71], v[72:73]
    v_pk_add_f32 v[74:75], v[74:75], v[76:77]
    v_pk_add_f32 v[62:63], v[62:63], v[66:67]
    v_pk_add_f32 v[70:71], v[70:71], v[74:75]
    v_mul_f32 v62, 0xbfb8aa3b, v62
    v_mul_f32 v63, 0xbfb8aa3b, v63
    v_exp_f32 v62, v62
    v_exp_f32 v63, v63
    v_add_f32 v62, 1.0, v62
    v_add_f32 v63, 1.0, v63
    v_rcp_f32 v62, v62
    v_rcp_f32 v63, v63
    v_pk_mul_f32 v[62:63], v[62:63], v[70:71]
    v_cvt_pk_bf16_f32 v62, v62, v63
    v_min_u32 v62, -2, v62
    global_store_dword v59, v62, s[30:31] sc1
    """)
    stamp(10)
    a("s_branch L_out")
    a.vm = []
    a("L_D:\ns_barrier")
    for e in range(nex, 14): exdma(e)
    a(f"""
    v_lshl_add_u32 v55, v1, 3, s65
    s_add_u32 s52, s30, {HH}
    s_addc_u32 s53, s31, 0
    s_mov_b32 s54, 27648
    s_mov_b32 s55, 0x20000
    v_lshrrev_b32 v53, 4, v1
    v_bfe_u32 v54, v1, 3, 1
    v_and_b32 v56, 7, v1
    v_lshlrev_b32 v57, 9, v54
    v_lshl_add_u32 v57, v53, 7, v57
    v_lshl_add_u32 v57, v56, 4, v57
    s_mul_i32 s58, s3, 7168
    v_add_u32 v57, s58, v57
    v_add_u32 v58, 4096, v57
    v_lshlrev_b32 v59, 6, v52
    v_lshl_add_u32 v59, v53, 4, v59
    s_lshl_b32 s58, s3, 10
    v_add_u32 v59, s58, v59
    v_lshlrev_b32 v60, 3, v1
    v_lshrrev_b32 v61, 3, v1
    v_mul_u32_u24 v61, 1280, v61
    v_lshl_add_u32 v61, v56, 2, v61
    s_lshl_b32 s58, s61, 5
    v_add_u32 v61, s58, v61
    v_lshlrev_b32 v40, 1, v61
    v_add_u32 v40, {ACC}, v40
    s_mov_b32 s68, 0xff00ff00
    s_mov_b32 s69, 0xff00ff00
    """)
    for e in range(14):
        a.vmwait(f"E{e}")
        r = 96 + 4*e
        a(f"ds_read_b64_tr_b16 v[{r}:{r+1}], v55 offset:{e*ESTR}")
        a(f"ds_read_b64_tr_b16 v[{r+2}:{r+3}], v55 offset:{e*ESTR+512}")
    stamp(6)
    sigpoll()
    stamp(7)
    a("global_load_dwordx2 v[42:43], v40, s[30:31] sc1")
    l0, l1 = lab("dp"), lab("dd")
    a(f"s_mov_b32 s66, 0\n{l0}:")
    for p in range(7):
        a(f"buffer_load_dwordx4 v[{160+4*p}:{163+4*p}], v{57 + p//4}, s[52:55], 0 offen offset:{(p%4)*1024} sc1")
    a(f"s_add_u32 s66, s66, 1\ns_cmp_gt_u32 s66, {SPIN}\ns_cbranch_scc1 {l1}")
    for p in range(7):
        a(f"s_waitcnt vmcnt({6-p})")
        if p == 0: a("v_max3_u32 v56, v160, v161, v162\nv_max_u32 v56, v56, v163")
        else: a(f"v_max3_u32 v56, v56, v{160+4*p}, v{161+4*p}\nv_max3_u32 v56, v56, v{162+4*p}, v{163+4*p}")
    a(f"v_cmp_eq_u32 vcc, -1, v56\ns_cbranch_vccnz {l0}\n{l1}:\ns_waitcnt vmcnt(0) lgkmcnt(0)")
    stamp(8)
    for p in range(7):
        for y in range(2):
            r = 96 + 4 * (2*p + y)
            d = 20 + 4*y
            c = "0" if p == 0 else f"v[{d}:{d+3}]"
            a(f"v_mfma_f32_16x16x32_bf16 v[{d}:{d+3}], v[{r}:{r+3}], v[{160+4*p}:{163+4*p}], {c}")
    a("v_cvt_pk_bf16_f32 v42, v42, v43\nv_and_b32 v43, 0xffff0000, v42\nv_lshlrev_b32 v42, 16, v42")
    for r in range(4): a(f"v_cndmask_b32 v{20+r}, v{20+r}, v{24+r}, s[68:69]")
    a(f"ds_write_b128 v59, v[20:23] offset:{RP}")
    a("s_waitcnt lgkmcnt(0)\ns_barrier")
    stamp(9)
    a("s_cmp_lg_u32 s3, 0\ns_cbranch_scc1 L_out")
    for k in range(8): a(f"ds_read_b64 v[{62+2*k}:{63+2*k}], v60 offset:{RP + k*512}")
    a("""
    s_waitcnt lgkmcnt(0)
    v_pk_add_f32 v[62:63], v[62:63], v[64:65]
    v_pk_add_f32 v[66:67], v[66:67], v[68:69]
    v_pk_add_f32 v[70:71], v[70:71], v[72:73]
    v_pk_add_f32 v[74:75], v[74:75], v[76:77]
    v_pk_add_f32 v[62:63], v[62:63], v[66:67]
    v_pk_add_f32 v[70:71], v[70:71], v[74:75]
    v_pk_add_f32 v[62:63], v[62:63], v[70:71]
    v_cvt_pk_bf16_f32 v62, v62, v63
    v_and_b32 v63, 0xffff0000, v62
    v_lshlrev_b32 v62, 16, v62
    v_pk_add_f32 v[62:63], v[62:63], v[42:43]
    v_cvt_pk_bf16_f32 v62, v62, v63
    global_store_dword v61, v62, s[26:27]
    """)
    stamp(10)
    a("L_out:")
    if stamps:
        a("s_waitcnt vmcnt(0)")
        stamp(11)
        a(f"""
        s_getreg_b32 s94, hwreg(HW_REG_XCC_ID)
        s_mov_b32 s96, s60
        s_waitcnt lgkmcnt(0)
        s_lshl_b32 s58, s2, 2
        s_add_u32 s58, s58, s3
        s_lshl_b32 s58, s58, 6
        s_add_u32 s58, s58, {STAMP}
        v_mov_b32 v52, s58
        """)
        for i in range(14):
            a(f"v_mov_b32 v53, s{70+2*i}\nglobal_store_dword v52, v53, s[30:31] offset:{4*i}")
    if amp2 is not None:
        kind, i1, k, role = amp2
        l0, l1, l2 = lab("amp"), lab("amp"), lab("amp")
        if role is not None:
            a(f"s_cmp_eq_u32 s60, {role}\ns_cselect_b32 s{70+2*i1}, s{70+2*i1}, 0")
        a(f"""
        s_cmp_lg_u32 s3, 0
        s_cbranch_scc1 L_end
        s_add_u32 s58, s70, 4000
        {l2}:
        s_sleep 10
        s_memrealtime s[66:67]
        s_waitcnt lgkmcnt(0)
        s_sub_u32 s59, s66, s58
        s_cmp_lt_i32 s59, 0
        s_cbranch_scc1 {l2}
        s_mov_b64 exec, 1
        v_mov_b32 v52, 0
        s_not_b32 s58, s70
        v_mov_b32 v53, s58
        global_atomic_umax v52, v53, s[28:29] offset:128
        v_mov_b32 v53, s{70+2*i1}
        global_atomic_umax v52, v53, s[28:29] offset:132
        v_and_b32 v53, 0xffffff, v53
        global_atomic_add v52, v53, s[28:29] offset:136
        s_cmp_lg_u32 s60, 2
        s_cbranch_scc1 L_end
        s_cmp_lg_u32 s61, 0
        s_cbranch_scc1 L_end
        s_add_u32 s58, s70, 7000
        {l0}:
        s_memrealtime s[66:67]
        s_waitcnt lgkmcnt(0)
        s_sub_u32 s59, s66, s58
        s_cmp_lt_i32 s59, 0
        s_cbranch_scc1 {l0}
        global_load_dwordx4 v[56:59], v52, s[28:29] offset:128 sc1
        s_waitcnt vmcnt(0)
        v_readfirstlane_b32 s62, v56
        v_readfirstlane_b32 s63, v57
        v_readfirstlane_b32 s64, v58
        s_not_b32 s62, s62
        """)
        if kind == "max": a("s_sub_u32 s59, s63, s62")
        else: a("s_lshr_b32 s64, s64, 8\ns_sub_u32 s59, s64, s62\ns_and_b32 s59, s59, 0xffffff")
        a(f"""
        s_min_u32 s59, s59, 10000
        s_mul_i32 s59, s59, {k}
        s_add_u32 s58, s58, s59
        {l1}:
        s_memrealtime s[66:67]
        s_waitcnt lgkmcnt(0)
        s_sub_u32 s59, s66, s58
        s_cmp_lt_i32 s59, 0
        s_cbranch_scc1 {l1}
        """)
    if amp is not None:
        i0, i1, role, idx, k = amp
        l0 = lab("amp")
        a(f"""
        s_cmp_lg_u32 s60, {role}
        s_cbranch_scc1 L_end
        s_cmp_lg_u32 s61, {idx}
        s_cbranch_scc1 L_end
        s_cmp_lg_u32 s3, 0
        s_cbranch_scc1 L_end
        s_sub_u32 s58, s{70+2*i1}, s{70+2*i0}
        s_min_u32 s58, s58, 10000
        s_mul_i32 s58, s58, {k}
        s_add_u32 s58, s58, s92
        {l0}:
        s_memrealtime s[66:67]
        s_waitcnt lgkmcnt(0)
        s_sub_u32 s59, s66, s58
        s_cmp_lt_i32 s59, 0
        s_cbranch_scc1 {l0}
        """)
    a("L_end:\ns_endpgm")
    a.raw('.section .rodata,"a"')
    a.raw(".p2align 6")
    a.raw(f".amdhsa_kernel {NAME}_kernel")
    a.raw("  .amdhsa_next_free_vgpr 512\n  .amdhsa_next_free_sgpr 102\n  .amdhsa_accum_offset 256")
    a.raw("  .amdhsa_group_segment_fixed_size 0\n  .amdhsa_kernarg_size 96\n  .amdhsa_user_sgpr_count 2")
    a.raw("  .amdhsa_user_sgpr_kernarg_segment_ptr 1\n  .amdhsa_system_sgpr_workgroup_id_x 1")
    a.raw("  .amdhsa_float_denorm_mode_32 3")
    a.raw(".end_amdhsa_kernel")
    return a.text()

if __name__ == "__main__":
    out = sys.argv[1] if len(sys.argv) > 1 else "cdna_kernels/" + NAME + ".s"
    kw = eval("dict(" + (sys.argv[2] if len(sys.argv) > 2 else "") + ")")
    open(out, "w").write(gen(**kw))
```

```python
import sys
sys.path.insert(0, "gen")
from asmlib import Asm
import numpy as np
NAME = "sequential_preLN__sliding_block_cached__glu_gated_glu__decode"
HEADER = open("cdna_kernels/" + NAME + ".s.ref").read().split("; Override launch")[0]

QP   = 0x000000
OS   = 0x080000
ZR   = 0x090000
ZS   = 5120
ACC  = ZR
SG   = ZR + 20480
SS   = 2560
FLGO = 2048
SLOW = 0x400000
HH   = 0x0A0000
STAMP = 0x100000
XN   = 0
SM   = 10752
WQL  = 16384
EXL  = 36864
ESTR = 1088
WSTR = 20 * ESTR
LDS_BYTES = EXL + 4 * WSTR
XSTR = 1312
SPIN = 1 << 16

def read_h(rd):
    return rd(np.float32, 5120, ACC).reshape(160, 8, 4).transpose(1, 0, 2).reshape(8, 640)
def read_o(rd, slow=0):
    o = rd(np.uint16, 32 * 8 * 128, OS + slow * SLOW).reshape(8, 2, 16, 2, 2, 4, 8)
    return o.transpose(5, 4, 1, 3, 0, 2, 6).reshape(8, 32, 128)

def gen(W=6, WR=7, W0=8, W0_until=12, WE=None, WE_from=128, nex=8, ex_at=72, ex_every=4, nexD=8,
        x_at=10, wq_every=2, dbg_at=24, poll_gap=11, npoll=3, qk_per=2, pv_per=3, pf_start=False, pf_tail=True, pf_at=110,
        stamps=False, dbgdump=False, verbose=False, trace=False, amp2=None, forceslow=False):
    a = Asm()
    a.raw(HEADER.rstrip())
    a.raw(f"; @launch grid=(256,1,1) block=(256,1,1) lds={LDS_BYTES}")
    a.raw('.amdgcn_target "amdgcn-amd-amdhsa--gfx950"')
    a.raw(".text")
    a.raw(f".globl {NAME}_kernel")
    a.raw(".p2align 8")
    a.raw(f".type {NAME}_kernel,@function")
    a.raw(f"{NAME}_kernel:")
    def stamp(i):
        if stamps: a(f"s_memrealtime s[{70+2*i}:{71+2*i}]")
    uid = [0]
    def lab(p):
        uid[0] += 1
        return f"L_{p}{uid[0]}"
    cold = []
    a("s_load_dwordx4 s[8:11], s[0:1], 0")
    stamp(0)
    a(f"""
    s_load_dwordx4 s[12:15], s[0:1], 16
    s_load_dwordx16 s[16:31], s[0:1], 32
    s_cmp_ge_u32 s2, 256
    s_cbranch_scc1 L_end
    v_lshlrev_b32 v2, 4, v0
    s_lshl_b32 s7, s2, 20
    s_add_u32 s7, s7, 0xC0000
    s_mov_b32 s34, 0x40000
    s_mov_b32 s35, 0x20000
    s_waitcnt lgkmcnt(0)
    s_add_u32 s32, s10, s7
    s_addc_u32 s33, s11, 0
    """)
    def kreg(i): return f"v[{96+4*i}:{99+4*i}]" if i < 40 else f"a[{4*(i-40)}:{4*(i-40)+3}]"
    def vreg(i): return f"a[{96+4*i}:{99+4*i}]" if i < 40 else f"a[{4*(i-40)}:{4*(i-40)+3}]"
    def wins(n):
        w = W
        if n < W0_until: w = W0
        if WE and n >= WE_from: w = WE
        return w, w + (WR - W)
    def window(n):
        w, wr = wins(n)
        def cnt(k):
            big = [i for i, t in enumerate(a.vm) if t and (t[0] in "KVE" or t == "wq")]
            if len(big) < k: return None
            return len(a.vm) - 1 - big[-k]
        c2 = cnt(w); c1 = cnt(wr)
        if c1 is not None: a(f"s_waitcnt vmcnt({c1})")
        if w != wr and c2 is not None:
            l = lab("w")
            a.raw(f"    s_cbranch_vccnz {l}")
            a.raw(f"    s_waitcnt vmcnt({c2})")
            a.raw(f"{l}:")
    def issue(n):
        i = n % 64
        a(f"s_mov_b32 s6, {i*4096}")
        if n < 64: a(f"buffer_load_dwordx4 {kreg(i)}, v2, s[32:35], s6 offen nt", tag=f"K{i}")
        else:      a(f"buffer_load_dwordx4 {vreg(i)}, v2, s[36:39], s6 offen nt", tag=f"V{i}")
    n0 = W0
    for n in range(n0 - 1): issue(n)
    lc = lab("lc")
    a(f"""
    v_lshrrev_b32 v52, 6, v0
    v_and_b32 v1, 63, v0
    v_readfirstlane_b32 s3, v52
    s_and_b32 s99, s2, 7
    s_mul_i32 s58, s99, {ZS}
    s_add_u32 s58, s58, {ZR}
    s_lshr_b32 s59, s2, 3
    s_or_b32 s59, s59, s3
    s_cbranch_scc1 {lc}
    v_add_u32 v52, s58, v2
    v_mov_b32 v56, 0
    v_mov_b32 v57, 0
    v_mov_b32 v58, 0
    v_mov_b32 v59, 0
    v_add_u32 v53, 4096, v52
    s_mul_i32 s59, s99, 3456
    s_add_u32 s59, s59, {HH}
    v_add_u32 v54, s59, v2
    v_mov_b32 v60, -1
    v_mov_b32 v61, -1
    v_mov_b32 v62, -1
    v_mov_b32 v63, -1
    """)
    for k in range(4): a(f"global_store_dwordx4 v52, v[56:59], s[30:31] offset:{k*1024} sc1", track=False)
    a("global_store_dwordx4 v53, v[56:59], s[30:31] sc1", track=False)
    for k in range(4): a(f"global_store_dwordx4 v54, v[60:63], s[30:31] offset:{k*1024} sc1", track=False)
    a(f"{lc}:")
    issue(n0 - 1)
    if stamps:
        for i in range(1, 14): a(f"s_mov_b32 s{70+2*i}, 0")
    a(f"""
    s_mul_i32 s58, s99, {SS}
    s_add_u32 s58, s58, {SG + FLGO}
    v_lshl_add_u32 v89, v1, 2, s58
    s_add_u32 s36, s12, s7
    s_addc_u32 s37, s13, 0
    s_lshr_b32 s4, s2, 5
    s_and_b32 s5, s2, 31
    v_lshrrev_b32 v52, 5, v0
    v_and_b32 v53, 31, v0
    v_mul_u32_u24 v37, 1280, v52
    v_lshl_add_u32 v37, v53, 3, v37
    v_mul_u32_u24 v91, {XSTR}, v52
    v_lshl_add_u32 v91, v53, 3, v91
    s_lshr_b32 s56, s4, 1
    s_and_b32 s57, s4, 1
    s_mul_i32 s58, s56, 160
    s_mul_i32 s59, s3, 40
    s_add_u32 s58, s58, s59
    v_lshrrev_b32 v52, 3, v1
    v_add_u32 v52, s58, v52
    v_lshlrev_b32 v52, 13, v52
    v_and_b32 v53, 7, v1
    v_lshl_add_u32 v52, v53, 4, v52
    s_lshl_b32 s58, s5, 8
    s_lshl_b32 s59, s57, 7
    s_add_u32 s58, s58, s59
    v_add_u32 v36, s58, v52
    s_mul_i32 s7, s3, 5120
    s_add_u32 s7, s7, {WQL}
    s_mov_b32 s38, 0x40000
    s_mov_b32 s39, 0x20000
    s_mov_b32 s42, 5242880
    s_mov_b32 s43, 0x20000
    s_mov_b32 s40, s14
    s_mov_b32 s41, s15
    """)
    a(f"""
    s_mul_i32 s58, s99, 12
    s_lshr_b32 s57, s5, 3
    s_mul_i32 s59, s57, 3
    s_add_u32 s58, s58, s59
    s_add_u32 s58, s58, s4
    s_sub_u32 s58, s58, 5
    s_sub_u32 s59, s58, 40
    s_cmp_lt_u32 s58, 40
    s_cselect_b32 s60, 2, 1
    s_cselect_b32 s61, s58, s59
    s_cmp_ge_u32 s58, 94
    s_cselect_b32 s60, 3, s60
    s_and_b32 s58, s57, 1
    s_lshl_b32 s59, s4, 1
    s_add_u32 s59, s59, s58
    s_cmp_lt_u32 s4, 5
    s_cselect_b32 s60, 0, s60
    s_cselect_b32 s61, s59, s61
    s_cselect_b64 vcc, 0, -1
    """)
    a(f"""
    s_lshr_b32 s55, s57, 1
    s_lshl_b32 s59, s99, 1
    s_add_u32 s55, s55, s59
    s_lshl_b32 s58, s58, 7
    s_and_b32 s59, s4, 1
    s_lshl_b32 s59, s59, 6
    s_add_u32 s58, s58, s59
    s_lshl_b32 s59, s56, 4
    s_add_u32 s58, s58, s59
    s_lshl_b32 s59, s55, 12
    s_add_u32 s58, s58, s59
    s_add_u32 s58, s58, {OS}
    v_and_b32 v52, 3, v1
    v_lshl_add_u32 v93, v52, 2, s58
    v_lshrrev_b32 v52, 2, v1
    v_lshl_add_u32 v93, v52, 8, v93
    """)
    def role_setup():
        lw, lf, lj = lab("rw"), lab("rf"), lab("rj")
        a(f"""
        s_mov_b32 s47, 0x20000
        s_mov_b32 s51, 0x20000
        s_mov_b32 s64, 0
        s_mul_i32 s65, s3, {WSTR}
        s_add_u32 s65, s65, {EXL}
        s_cmp_eq_u32 s60, 1
        s_cbranch_scc1 {lf}
        s_cmp_eq_u32 s60, 0
        s_cbranch_scc1 {lw}
        s_mov_b32 s44, s24
        s_mov_b32 s45, s25
        s_cmp_eq_u32 s60, 2
        s_cselect_b32 s46, 2211840, 0
        s_mov_b32 s48, s24
        s_mov_b32 s49, s25
        s_mov_b32 s50, s46
        s_mov_b32 s62, 40960
        s_mov_b32 s63, 40960
        s_mul_i32 s58, s3, 448
        v_lshrrev_b32 v86, 1, v1
        v_add_u32 v86, s58, v86
        v_mul_u32_u24 v86, 1280, v86
        v_and_b32 v87, 1, v1
        v_lshl_add_u32 v86, v87, 4, v86
        s_lshl_b32 s58, s61, 5
        v_add_u32 v3, s58, v86
        s_branch {lj}
        {lf}:
        s_mov_b32 s44, s20
        s_mov_b32 s45, s21
        s_mov_b32 s46, 2211840
        s_mov_b32 s48, s22
        s_mov_b32 s49, s23
        s_mov_b32 s50, 2211840
        s_mov_b32 s62, 0
        s_mov_b32 s63, 55296
        s_mul_i32 s58, s3, 160
        v_lshrrev_b32 v86, 2, v1
        v_add_u32 v86, s58, v86
        v_mul_u32_u24 v86, 3456, v86
        v_lshrrev_b32 v87, 4, v1
        v_and_b32 v87, 2, v87
        v_xor_b32 v87, v87, v1
        v_and_b32 v87, 3, v87
        v_lshl_add_u32 v86, v87, 4, v86
        s_lshl_b32 s58, s61, 6
        v_add_u32 v3, s58, v86
        s_branch {lj}
        {lw}:
        s_mov_b32 s44, s16
        s_mov_b32 s45, s17
        s_mov_b32 s46, 5242880
        s_mov_b32 s48, s16
        s_mov_b32 s49, s17
        s_mov_b32 s50, 5242880
        s_mov_b32 s62, 10240
        s_mov_b32 s63, 10240
        s_and_b32 s58, s5, 0x17
        s_lshr_b32 s59, s3, 1
        s_lshl_b32 s59, s59, 3
        s_add_u32 s58, s58, s59
        s_lshl_b32 s58, s58, 7
        s_and_b32 s59, s3, 1
        s_lshl_b32 s59, s59, 6
        s_add_u32 s58, s58, s59
        v_lshrrev_b32 v87, 3, v1
        v_add_u32 v86, s58, v87
        v_mul_u32_u24 v86, 1280, v86
        v_and_b32 v87, 2, v87
        v_xor_b32 v87, v87, v1
        v_and_b32 v87, 7, v87
        v_lshl_add_u32 v86, v87, 4, v86
        s_lshl_b32 s58, s61, 7
        v_add_u32 v3, s58, v86
        {lj}:
        """)
    def exdma(e):
        srd = "s[44:47]" if e % 2 == 0 else "s[48:51]"
        a(f"s_add_u32 m0, s65, {e*ESTR}")
        a(f"buffer_load_dwordx4 v3, {srd}, s64 offen nt lds", tag=f"E{e}")
        a(f"s_add_u32 s64, s64, s{62 + e % 2}")
    def masks():
        a("""
        v_and_b32 v86, 1, v1
        v_mov_b32 v87, 0xffff
        v_lshlrev_b32 v86, 4, v86
        v_lshlrev_b32 v86, v86, v87
        v_bfe_u32 v87, v1, 1, 2
        """)
        for r in range(4):
            a(f"v_cmp_eq_u32 s[58:59], {r}, v87")
            a(f"v_cndmask_b32 v{4+r}, 0, v86, s[58:59]")
    def leader_flag():
        l = lab("lf")
        a(f"""
        s_getreg_b32 s98, hwreg(HW_REG_XCC_ID, 0, 4)
        s_add_u32 s98, s98, 1
        s_lshr_b32 s59, s2, 3
        s_or_b32 s59, s59, s3
        s_cbranch_scc1 {l}
        s_lshl_b32 s58, s99, 5
        v_mov_b32 v86, s58
        v_mov_b32 v87, s98
        s_mov_b64 exec, 1
        """)
        a("global_store_dword v86, v87, s[28:29] sc1", track=False)
        a(f"s_mov_b64 exec, -1\n{l}:")
    def prefetch_code(l0, sh, tag):
        lp = lab("pc")
        a(f"s_getpc_b64 s[58:59]")
        a.raw(f"{lp}:")
        if l0:
            a(f"s_add_u32 s58, s58, {l0}-{lp}")
            a("s_addc_u32 s59, s59, 0")
        a(f"v_lshlrev_b32 v84, {sh}, v0")
        a(f"global_load_dword v85, v84, s[58:59]", tag=tag)
    def xloads():
        for j in range(5):
            a(f"global_load_dwordx2 v[{52+2*j}:{53+2*j}], v37, s[8:9] offset:{j*256}", tag="x")
    def wqdma(e):
        a(f"s_add_u32 m0, s7, {e*1024}")
        a(f"s_mov_b32 s58, {e*65536}")
        a(f"buffer_load_dwordx4 v36, s[40:43], s58 offen nt lds", tag="wq")

    F = list(range(62, 82))
    def red32(r, t, op="v_add_f32"):
        o = [f"{op}_dpp v{r}, v{r}, v{r} row_ror:{k} row_mask:0xf bank_mask:0xf" for k in (8, 4, 2, 1)]
        o += [f"v_mov_b32 v{t}, v{r}", f"v_permlane16_swap_b32 v{r}, v{t}", f"{op} v{r}, v{r}, v{t}"]
        return o
    def red64(r, t, op):
        return red32(r, t, op) + [f"v_mov_b32 v{t}, v{r}", f"v_permlane32_swap_b32 v{r}, v{t}", f"{op} v{r}, v{r}, v{t}"]
    def rbf(r): return [f"v_cvt_pk_bf16_f32 v{r}, v{r}, v{r}", f"v_lshlrev_b32 v{r}, 16, v{r}"]
    def ln1_a():
        a.vmwait("x")
        for j in range(5):
            for t in range(2):
                a(f"v_lshlrev_b32 v{F[4*j+2*t]}, 16, v{52+2*j+t}")
                a(f"v_and_b32 v{F[4*j+2*t+1]}, 0xffff0000, v{52+2*j+t}")
    def ln1_a2():
        a(f"v_pk_add_f32 v[82:83], v[{F[0]}:{F[1]}], v[{F[2]}:{F[3]}]")
        for k in range(2, 10): a(f"v_pk_add_f32 v[82:83], v[82:83], v[{F[2*k]}:{F[2*k+1]}]")
        a("v_add_f32 v82, v82, v83")
        a("\n".join(red32(82, 83)))
        a("v_mul_f32 v82, 0x3acccccd, v82")
    def ln1_b():
        a("v_mov_b32 v84, 0\nv_mov_b32 v85, 0\nv_mov_b32 v83, v82")
        for k in range(10):
            a(f"v_pk_add_f32 v[86:87], v[{F[2*k]}:{F[2*k+1]}], v[82:83] neg_lo:[0,1] neg_hi:[0,1]")
            a(f"v_pk_fma_f32 v[84:85], v[86:87], v[86:87], v[84:85]")
    def ln1_b2():
        a("v_add_f32 v84, v84, v85")
        a("\n".join(red32(84, 85)))
        a("v_mul_f32 v84, 0x3acccccd, v84")
        a("\n".join(rbf(84)))
        a("v_add_f32 v84, 0x3727c5ac, v84")
        a("\n".join(rbf(84)))
        a("v_sqrt_f32 v84, v84")
        a("\n".join(rbf(84)))
        a("v_rcp_f32 v84, v84")
        a("\n".join(rbf(82)))
        a("v_mov_b32 v83, v82\nv_mov_b32 v85, v84")
    def ln1_c(js):
        def f():
            for j in js:
                for t in range(2):
                    k = 2 * j + t
                    x0, x1 = F[2*k], F[2*k+1]
                    a(f"v_pk_add_f32 v[{x0}:{x1}], v[{x0}:{x1}], v[82:83] neg_lo:[0,1] neg_hi:[0,1]")
                    a(f"v_cvt_pk_bf16_f32 v86, v{x0}, v{x1}")
                    a(f"v_lshlrev_b32 v{x0}, 16, v86")
                    a(f"v_and_b32 v{x1}, 0xffff0000, v86")
                    a(f"v_pk_mul_f32 v[{x0}:{x1}], v[{x0}:{x1}], v[84:85]")
                    a(f"v_cvt_pk_bf16_f32 v{52+k}, v{x0}, v{x1}")
                a(f"ds_write_b64 v91, v[{52+2*j}:{53+2*j}] offset:{XN + j*256}")
        return f
    def dbg_load():
        a("v_and_b32 v88, 7, v1\nv_lshlrev_b32 v88, 5, v88")
        a("global_load_dword v90, v88, s[28:29] sc1", tag="dbg")
    def dbg_chk():
        a.vmwait("dbg")
        l0, l1 = lab("dl"), lab("dd")
        a(f"""
        v_cmp_eq_u32 s[58:59], 0, v90
        s_cmp_lg_u32 s58, 0
        s_cbranch_scc1 {l0}
        {l1}:
        v_readlane_b32 s58, v90, s99
        s_cmp_lg_u32 s58, s98
        s_cselect_b32 s98, 1, {1 if forceslow else 0}
        """)
        l2 = lab("dx")
        cold.append(f"""
        {l0}:
        s_mov_b32 s57, 0
        {l2}:
        s_sleep 4
        global_load_dword v90, v88, s[28:29] sc1
        s_add_u32 s57, s57, 1
        s_waitcnt vmcnt(0)
        v_cmp_eq_u32 s[58:59], 0, v90
        s_cmp_gt_u32 s57, {SPIN}
        s_cbranch_scc1 {l1}
        s_cmp_lg_u32 s58, 0
        s_cbranch_scc1 {l2}
        s_branch {l1}
        """)
    def qgemm_0():
        a(f"""
        v_lshrrev_b32 v54, 4, v1
        v_bfe_u32 v55, v1, 2, 2
        v_lshl_add_u32 v55, v54, 3, v55
        v_lshlrev_b32 v52, 7, v55
        v_and_b32 v55, 3, v1
        v_lshl_add_u32 v52, v55, 3, v52
        s_lshl_b32 s58, s3, 5
        s_add_u32 s58, s58, {WQL}
        v_add_u32 v52, s58, v52
        v_and_b32 v55, 7, v1
        v_mul_u32_u24 v53, {XSTR}, v55
        v_lshl_add_u32 v53, v54, 4, v53
        s_mul_i32 s58, s56, 320
        v_add_u32 v53, s58, v53
        v_lshlrev_b32 v55, 11, v55
        v_lshl_add_u32 v54, v54, 4, v55
        s_lshl_b32 s58, s5, 14
        s_lshl_b32 s59, s4, 8
        s_add_u32 s58, s58, s59
        s_lshl_b32 s59, s3, 6
        s_add_u32 s58, s58, s59
        s_add_u32 s58, s58, {QP}
        v_add_u32 v54, s58, v54
        """)
    def qgemm_a():
        a.vmwait("wq", "lgkmcnt(0)")
        a("s_barrier")
        for s in range(5):
            a(f"ds_read_b64_tr_b16 v[{12+4*s}:{13+4*s}], v52 offset:{s*4096}")
            a(f"ds_read_b64_tr_b16 v[{14+4*s}:{15+4*s}], v52 offset:{s*4096+512}")
            a(f"ds_read_b128 v[{32+4*s}:{35+4*s}], v53 offset:{XN + s*64}")
    def qgemm_b():
        a("s_waitcnt lgkmcnt(0)")
        for s in range(5):
            c = "0" if s == 0 else "v[56:59]"
            a(f"v_mfma_f32_16x16x32_bf16 v[56:59], v[{12+4*s}:{15+4*s}], v[{32+4*s}:{35+4*s}], {c}")
        a(f"""
        s_mul_i32 s58, s99, {SS}
        s_lshr_b32 s59, s2, 3
        s_lshl_b32 s59, s59, 2
        s_add_u32 s58, s58, s59
        s_add_u32 s58, s58, s3
        s_add_u32 s58, s58, {SG + FLGO}
        v_mov_b32 v55, s58
        v_mov_b32 v60, -1
        v_mov_b32 v61, 1
        """)
    def qstores(pol, track):
        o = f"""
        s_lshl_b32 s58, s3, 4
        s_lshl_b64 exec, 0xffff, s58
        global_store_dword v93, v60, s[30:31] {pol}
        s_mov_b32 exec_lo, 0x00ff00ff
        s_mov_b32 exec_hi, 0x00ff00ff
        global_store_dwordx4 v54, v[56:59], s[30:31] {pol}
        s_mov_b64 exec, -1
        """
        return o
    def republish():
        return f"""
        s_mov_b32 s98, {SLOW}
        v_add_u32 v93, s98, v93
        v_add_u32 v54, s98, v54
        """ + qstores("sc1", False) + """
        s_waitcnt vmcnt(0)
        s_mov_b64 exec, 1
        global_store_byte v55, v61, s[30:31] offset:128 sc1
        s_mov_b64 exec, -1
        """
    def qstore():
        a(qstores("", True), tag="qst")
    def qflag():
        a.vmwait("qst")
        l0, l1 = lab("fs"), lab("fj")
        a(f"s_cmp_lg_u32 s98, 0\ns_cbranch_scc1 {l0}\ns_mov_b64 exec, 1")
        a("global_store_byte v55, v61, s[30:31]", tag="flag")
        a(f"s_mov_b64 exec, -1\n{l1}:")
        cold.append(f"{l0}:\n" + republish() + f"s_branch {l1}")
        stamp(1)
    def qpoll_a():
        a("global_load_dword v53, v89, s[30:31] sc1", tag="poll")
    def qpoll_b():
        a.vmwait("poll")
        l0, l1, l2, l3, l4 = lab("pl"), lab("pd"), lab("pl"), lab("pl"), lab("pl")
        a(f"""
        s_mov_b32 s66, 0x01010101
        v_cmp_ne_u32 s[58:59], s66, v53
        s_or_b32 s58, s58, s98
        s_cbranch_scc1 {l0}
        {l1}:
        """)
        cold.append(f"""
        {l0}:
        s_mov_b32 s57, 0
        {l2}:
        v_cmp_ne_u32 s[58:59], s66, v53
        v_cmp_ne_u32 s[68:69], 0, v53
        s_cmp_lg_u32 s98, 0
        s_cbranch_scc1 {l3}
        s_cmp_eq_u32 s58, 0
        s_cbranch_scc1 {l1}
        s_cmp_eq_u32 s69, 0
        s_cbranch_scc1 {l4}
        """ + republish() + f"""
        s_branch {l4}
        {l3}:
        s_cmp_eq_u32 s59, 0
        s_cbranch_scc1 {l1}
        {l4}:
        s_add_u32 s57, s57, 1
        s_cmp_gt_u32 s57, {SPIN}
        s_cbranch_scc1 {l1}
        s_sleep 2
        global_load_dword v53, v89, s[30:31] sc1
        s_waitcnt vmcnt(0)
        s_branch {l2}
        """)
        stamp(2)
        a(f"""
        v_lshrrev_b32 v52, 4, v1
        v_lshlrev_b32 v52, 9, v52
        v_and_b32 v53, 15, v1
        v_lshl_add_u32 v52, v53, 5, v52
        s_lshl_b32 s58, s5, 14
        s_lshl_b32 s59, s4, 11
        s_add_u32 s58, s58, s59
        s_add_u32 s58, s58, s98
        s_add_u32 s58, s58, {QP}
        v_add_u32 v52, s58, v52
        """)
        a("global_load_dwordx4 v[56:59], v52, s[30:31] sc1", tag="qg")
        a("global_load_dwordx4 v[60:63], v52, s[30:31] offset:16 sc1", tag="qg")
    def qfin0(sw):
        a.vmwait("qg")
        for r in range(8): a(f"v_mov_b32 v{64+r}, v{56+r}")
        for r in range(8): a(f"{sw} v{56+r}, v{64+r}")
        for r in range(8): a(f"v_add_f32 v{56+r}, v{56+r}, v{64+r}")
    def qfin():
        qfin0("v_permlane16_swap_b32")
        for r in range(4): a(f"v_cvt_pk_bf16_f32 v{8+r}, v{56+2*r}, v{57+2*r}")
        a("s_mov_b32 s66, 0xaaaaaaaa\ns_mov_b32 s67, 0xaaaaaaaa\ns_mov_b32 s68, 0xcccccccc\ns_mov_b32 s69, 0xcccccccc")
    P = list(range(36, 52))
    def qk(i0, cnt):
        def f():
            a.vmwait(f"K{i0+cnt-1}")
            srcs = []
            for i in range(i0, i0 + cnt):
                t = i % 16
                if i < 40: src = [96 + 4*i + r for r in range(4)]
                else:
                    base = 28 + 4 * (i % 2)
                    src = [base + r for r in range(4)]
                    for r in range(4): a(f"v_accvgpr_read_b32 v{base+r}, a{4*(i-40)+r}")
                srcs.append((t, src))
                a(f"v_mov_b32 v{P[t]}, 0")
                if len(srcs) == 2:
                    for r in range(4):
                        for (t2, s2) in srcs: a(f"v_dot2c_f32_bf16 v{P[t2]}, v{s2[r]}, v{8+r}")
                    srcs.clear()
        return f
    def qkred(m):
        def f():
            for t in range(8): a(f"v_add_f32_dpp v{P[t]}, v{P[t]}, v{P[t]} row_ror:8 row_mask:0xf bank_mask:0x3")
            for t in range(8): a(f"v_add_f32_dpp v{P[t]}, v{P[t+8]}, v{P[t+8]} row_ror:8 row_mask:0xf bank_mask:0xc")
            for t in range(4): a(f"v_add_f32_dpp v{P[t]}, v{P[t]}, v{P[t]} row_ror:12 row_mask:0xf bank_mask:0x5")
            for t in range(4): a(f"v_add_f32_dpp v{P[t]}, v{P[t+4]}, v{P[t+4]} row_ror:4 row_mask:0xf bank_mask:0xa")
            for t in range(4): a(f"v_add_f32_dpp v{P[t]}, v{P[t]}, v{P[t]} quad_perm:[1,0,3,2] row_mask:0xf bank_mask:0xf")
            for t in range(4): a(f"v_add_f32_dpp v{P[t]}, v{P[t]}, v{P[t]} quad_perm:[2,3,0,1] row_mask:0xf bank_mask:0xf")
            a(f"v_cndmask_b32 v{P[0]}, v{P[0]}, v{P[1]}, s[66:67]")
            a(f"v_cndmask_b32 v{P[2]}, v{P[2]}, v{P[3]}, s[66:67]")
            a(f"v_cndmask_b32 v{12+m}, v{P[0]}, v{P[2]}, s[68:69]")
        return f
    def softmax_a():
        a("v_cvt_pk_bf16_f32 v52, v12, v13\nv_cvt_pk_bf16_f32 v53, v14, v15")
        a("v_lshlrev_b32 v12, 16, v52\nv_and_b32 v13, 0xffff0000, v52\nv_lshlrev_b32 v14, 16, v53\nv_and_b32 v15, 0xffff0000, v53")
        for m in range(4): a(f"v_mul_f32 v{12+m}, 0x3db504f3, v{12+m}")
        a("v_cvt_pk_bf16_f32 v52, v12, v13\nv_cvt_pk_bf16_f32 v53, v14, v15")
        a("v_lshlrev_b32 v12, 16, v52\nv_and_b32 v13, 0xffff0000, v52\nv_lshlrev_b32 v14, 16, v53\nv_and_b32 v15, 0xffff0000, v53")
        if dbgdump:
            a(f"s_lshl_b32 s58, s2, 12\ns_lshl_b32 s59, s3, 10\ns_add_u32 s58, s58, s59\ns_add_u32 s58, s58, 0x200000\nv_lshl_add_u32 v54, v1, 2, s58")
            for m in range(4): a(f"global_store_dword v54, v{12+m}, s[30:31] offset:{m*256}", track=False)
        a("v_max_f32 v52, v12, v13\nv_max3_f32 v52, v52, v14, v15")
        a("\n".join(red64(52, 53, "v_max_f32")))
    def softmax_a2():
        for m in range(4): a(f"v_sub_f32 v{12+m}, v{12+m}, v52")
        for m in range(4): a(f"v_mul_f32 v{12+m}, 0x3fb8aa3b, v{12+m}")
        for m in range(4): a(f"v_exp_f32 v{12+m}, v{12+m}")
        a("v_add_f32 v53, v12, v13\nv_add_f32 v54, v14, v15\nv_add_f32 v53, v53, v54")
        a("\n".join(red64(53, 54, "v_add_f32")))
        a(f"s_lshl_b32 s58, s3, 3\nv_mov_b32 v54, s58\nds_write_b64 v54, v[52:53] offset:{SM}")
    def softmax_b0():
        a("s_waitcnt lgkmcnt(0)\ns_barrier\nv_mov_b32 v54, 0")
        a(f"ds_read_b128 v[56:59], v54 offset:{SM}\nds_read_b128 v[60:63], v54 offset:{SM+16}")
    def softmax_b():
        a("s_waitcnt lgkmcnt(0)")
        a("v_max_f32 v54, v56, v58\nv_max3_f32 v54, v54, v60, v62")
        for r in (56, 58, 60, 62, 52): a(f"v_sub_f32 v{r}, v{r}, v54")
        for r in (56, 58, 60, 62, 52): a(f"v_mul_f32 v{r}, 0x3fb8aa3b, v{r}")
        for r in (56, 58, 60, 62, 52): a(f"v_exp_f32 v{r}, v{r}")
        a("v_mul_f32 v54, v56, v57\nv_fmac_f32 v54, v58, v59\nv_fmac_f32 v54, v60, v61\nv_fmac_f32 v54, v62, v63")
        a("v_rcp_f32 v54, v54\nv_mul_f32 v52, v52, v54")
        for m in range(4): a(f"v_mul_f32 v{12+m}, v{12+m}, v52")
        for m in range(4): a(f"v_cvt_pk_bf16_f32 v{12+m}, v{12+m}, v{12+m}")
        build(0)
        stamp(3)
    def build(i):
        b = 20 + 4 * (i % 2)
        for r in range(4):
            a(f"v_and_b32_dpp v{b+r}, v{12 + i//16}, v{4+r} row_newbcast:{i%16} row_mask:0xf bank_mask:0xf")
    def pv(i):
        if i + 1 < 64: build(i + 1)
        a.vmwait(f"V{i}")
        b = 20 + 4 * (i % 2)
        c = "0" if i == 0 else "v[16:19]"
        a(f"v_mfma_f32_16x16x32_bf16 v[16:19], v[{b}:{b+3}], {vreg(i)}, {c}")
    def tail_pre_a():
        a(f"""
        v_and_b32 v52, 15, v1
        v_lshrrev_b32 v53, 4, v1
        v_and_b32 v56, 1, v53
        v_lshlrev_b32 v54, 5, v52
        v_lshl_add_u32 v54, v56, 4, v54
        s_lshl_b32 s58, s3, 9
        v_add_u32 v54, s58, v54
        v_lshlrev_b32 v55, 3, v1
        v_bfe_u32 v57, v1, 3, 1
        s_lshl_b32 s58, s55, 12
        s_add_u32 s58, s58, s98
        s_add_u32 s58, s58, {OS}
        v_lshl_add_u32 v36, v1, 4, s58
        v_mul_u32_u24 v37, {ESTR}, v53
        v_bfe_u32 v58, v1, 2, 2
        v_lshl_add_u32 v37, v58, 7, v37
        v_and_b32 v58, 3, v1
        v_lshl_add_u32 v37, v58, 3, v37
        v_xor_b32 v57, s3, v57
        v_lshl_add_u32 v37, v57, 5, v37
        v_add_u32 v37, {EXL}, v37
        v_add_u32 v38, {2*WSTR}, v37
        """)
    def tail_pre_b():
        l = lab("ci")
        a(f"""
        v_lshrrev_b32 v57, 5, v1
        s_lshl_b32 s58, s61, 6
        s_lshl_b32 s59, s3, 4
        s_add_u32 s58, s58, s59
        v_add_u32 v58, s58, v52
        s_lshl_b32 s58, s58, 5
        s_add_u32 s58, s58, {ACC}
        v_lshl_add_u32 v39, v52, 2, s58
        v_lshl_add_u32 v39, v57, 6, v39
        v_lshl_add_u32 v39, v56, 8, v39
        s_mul_i32 s58, s55, 10
        s_add_u32 s58, s58, s61
        s_and_b32 s58, s58, 15
        s_lshl_b32 s58, s58, 7
        s_add_u32 s58, s58, {SG}
        v_mul_u32_u24 v40, {SS}, v1
        v_add_u32 v40, s58, v40
        v_mov_b32 v41, 1
        v_mov_b32 v44, 0
        v_mov_b32 v45, 0
        v_mov_b32 v46, 0
        v_mov_b32 v47, 0
        s_or_b32 s58, s55, s60
        s_cbranch_scc1 {l}
        v_mul_u32_u24 v57, 1280, v56
        v_lshl_add_u32 v57, v58, 1, v57
        v_add_u32 v57, 3840, v57
        """)
        for r in range(4): a(f"global_load_short_d16_hi v{44+r}, v57, s[8:9] offset:{r*2560-3840}", track=False)
        a(f"{l}:")

    xa = max(x_at, n0)
    wqs = [xa + 1 + wq_every * e for e in range(5)]
    Q = []
    if pf_start: Q.append((0, None, lambda: prefetch_code(None, 6, "pf")))
    Q += [(0, None, role_setup), (0, None, masks)]
    Q += [(xa, None, xloads), (0, f"K{n0-1}", leader_flag), (0, "x", ln1_a)]
    Q += [(0, None, f) for f in (ln1_a2, ln1_b, ln1_b2)]
    Q += [(0, None, ln1_c([0])), (0, None, ln1_c([1, 2])), (0, None, ln1_c([3, 4])), (0, None, qgemm_0)]
    Q += [(wqs[-1] + 1, "wq", qgemm_a), (0, None, qgemm_b), (dbg_at, None, lambda: (qstore(), dbg_load())), (0, "dbg", lambda: (dbg_chk(), qflag()))]
    Q += [(-poll_gap, None, qpoll_a), (0, "poll", qpoll_b), (0, "qg", lambda: qfin0("v_permlane32_swap_b32")), (0, None, qfin)]
    kdone = [0]
    def mkqk(i):
        f = qk(i, qk_per)
        def g():
            f(); kdone[0] = i + qk_per
        return g
    for i in range(0, 64, qk_per):
        Q.append((i + qk_per, f"K{i+qk_per-1}", mkqk(i)))
        if (i + qk_per) % 16 == 0: Q.append((0, None, qkred((i + qk_per) // 16 - 1)))
    smb = [999]
    def smb_f():
        softmax_b(); smb[0] = cur[0]
    Q += [(0, None, softmax_a), (0, None, softmax_a2), (0, None, softmax_b0), (0, None, smb_f)]
    if pf_tail: Q.append((pf_at, None, lambda: prefetch_code("L_tail", 5, "pf")))
    Q += [(116, None, tail_pre_a), (0, None, tail_pre_b)]
    pvdone = [0]; exi = 0; cur = [0]; log = []; lastq = 0
    for n in range(n0, 128):
        cur[0] = n
        window(n)
        if trace:
            if n > n0:
                a("s_waitcnt lgkmcnt(0)")
                a(f"v_writelane_b32 v{94 + (n-1)//64}, s100, {(n-1)%64}")
            a("s_memrealtime s[100:101]")
        assert n < 104 or kdone[0] > n - 64
        issue(n)
        if n in wqs:
            window(n); wqdma(wqs.index(n))
        if n >= ex_at and (n - ex_at) % ex_every == 0 and exi < nex:
            window(n); exdma(exi); exi += 1
        if Q:
            mn, tg, f = Q[0]
            if mn < 0: mn = lastq - mn
            if mn <= n and (tg is None or tg not in a.vm):
                Q.pop(0); f(); lastq = n; log.append((n, getattr(f, "__name__", "?")))
        if n > smb[0]:
            c = 0
            while pvdone[0] <= n - 64 and f"V{pvdone[0]}" not in a.vm and c < pv_per:
                pv(pvdone[0]); pvdone[0] += 1; c += 1
    assert not Q, Q
    if verbose: print(log, "pv backlog", 64 - pvdone[0])
    assert exi == nex
    if trace:
        a(f"""
        s_lshl_b32 s58, s2, 11
        s_lshl_b32 s59, s3, 9
        s_add_u32 s58, s58, s59
        s_add_u32 s58, s58, 0x300000
        v_lshl_add_u32 v57, v1, 2, s58
        """)
        a("global_store_dword v57, v94, s[30:31]", track=False)
        a("global_store_dword v57, v95, s[30:31] offset:256", track=False)
    a.raw("L_tail:")
    while pvdone[0] < 64:
        pv(pvdone[0]); pvdone[0] += 1
    stamp(4)
    OP = SM + 64
    RP = WQL
    a(f"ds_write_b128 v54, v[16:19] offset:{OP}")
    a("s_waitcnt vmcnt(0) lgkmcnt(0)\ns_barrier")
    lp, ls = lab("pub"), lab("pubs")
    a(f"s_cmp_lg_u32 s3, 0\ns_cbranch_scc1 {lp}")
    for w in range(4): a(f"ds_read_b64 v[{56+2*w}:{57+2*w}], v55 offset:{OP + w*512}")
    a(f"""
    s_waitcnt lgkmcnt(0)
    v_pk_add_f32 v[56:57], v[56:57], v[58:59]
    v_pk_add_f32 v[60:61], v[60:61], v[62:63]
    v_pk_add_f32 v[56:57], v[56:57], v[60:61]
    v_cvt_pk_bf16_f32 v56, v56, v57
    v_min_u32 v56, -2, v56
    s_cmp_lg_u32 s98, 0
    s_cbranch_scc1 {ls}
    """)
    a("global_store_dword v93, v56, s[30:31]", track=False)
    cold.append(f"{ls}:\nglobal_store_dword v93, v56, s[30:31] sc1\ns_branch {lp}")
    a(f"{lp}:")
    stamp(5)
    a("s_cbranch_vccnz L_role")
    for s in range(8):
        r = 96 + 4*s
        off = ((s >> 1) & 1) * WSTR + (s & 1) * 4 * ESTR
        a(f"ds_read_b64_tr_b16 v[{r}:{r+1}], v{37 + (s >> 2)} offset:{off}")
        a(f"ds_read_b64_tr_b16 v[{r+2}:{r+3}], v{37 + (s >> 2)} offset:{off + 512}")
    l0, l1 = lab("wp"), lab("wd")
    a(f"s_mov_b32 s66, 0\ns_mov_b32 s68, 0\ns_mov_b32 s69, -1\n{l0}:")
    for s in range(4): a(f"global_load_dwordx4 v[{64+4*s}:{67+4*s}], v36, s[30:31] offset:{s*1024} sc1")
    a(f"s_add_u32 s66, s66, 1\ns_cmp_gt_u32 s66, {SPIN}\ns_cbranch_scc1 {l1}")
    for s in range(4):
        a(f"s_waitcnt vmcnt({3-s})")
        if s == 0: a("v_max3_u32 v56, v64, v65, v66\nv_max_u32 v56, v56, v67")
        else: a(f"v_max3_u32 v56, v56, v{64+4*s}, v{65+4*s}\nv_max3_u32 v56, v56, v{66+4*s}, v{67+4*s}")
    a(f"v_cmp_eq_u32 vcc, -1, v56\ns_cbranch_vccnz {l0}\n{l1}:\ns_waitcnt vmcnt(0) lgkmcnt(0)")
    stamp(6)
    for s in range(4):
        a(f"v_mfma_f32_16x16x32_bf16 v[44:47], v[{64+4*s}:{67+4*s}], v[{96+4*s}:{99+4*s}], v[44:47]")
        c = "0" if s == 0 else "v[48:51]"
        a(f"v_mfma_f32_16x16x32_bf16 v[48:51], v[{64+4*s}:{67+4*s}], v[{112+4*s}:{115+4*s}], {c}")
    a("""
    v_permlane32_swap_b32 v48, v46
    v_permlane32_swap_b32 v49, v47
    v_cndmask_b32 v44, v44, v50, s[68:69]
    v_cndmask_b32 v45, v45, v51, s[68:69]
    v_cndmask_b32 v46, v46, v48, s[68:69]
    v_cndmask_b32 v47, v47, v49, s[68:69]
    v_add_f32 v45, v45, v47
    v_add_f32 v48, v44, v46
    v_add_f32 v44, v44, v46
    v_mov_b32_dpp v44, v45 row_ror:8 row_mask:0xf bank_mask:0xc
    v_mov_b32_dpp v45, v48 row_ror:8 row_mask:0xf bank_mask:0x3
    v_permlane16_swap_b32 v44, v45
    v_mov_b32 v48, v44
    v_mov_b32_dpp v44, v45 row_ror:4 row_mask:0xf bank_mask:0xa
    v_mov_b32_dpp v45, v48 row_ror:12 row_mask:0xf bank_mask:0x5
    """)
    a(f"global_atomic_add_f32 v39, v44, s[30:31]")
    a(f"global_atomic_add_f32 v39, v45, s[30:31] offset:128")
    a("s_waitcnt vmcnt(0)\ns_barrier")
    stamp(7)
    a("s_cmp_lg_u32 s3, 0\ns_cbranch_scc1 L_out\ns_mov_b64 exec, 0xff")
    a("global_atomic_add v40, v41, s[30:31]")
    a("s_mov_b64 exec, -1\ns_branch L_out")

    def sigpoll():
        l0, l1 = lab("sp"), lab("sd")
        a(f"""
        s_mul_i32 s58, s99, {SS}
        s_add_u32 s58, s58, {SG}
        v_lshl_add_u32 v88, v52, 7, s58
        s_mov_b32 s66, 0
        s_cmp_lg_u32 s3, 0
        s_cbranch_scc1 {l1}
        s_mov_b64 exec, 0xffff
        """)
        R = [89, 87, 86][:npoll]
        for r in R[:-1]: a(f"global_load_dword v{r}, v88, s[30:31] sc1\ns_sleep 1")
        a(f"{l0}:\ns_add_u32 s66, s66, 1\ns_cmp_gt_u32 s66, {SPIN}\ns_cbranch_scc1 {l1}")
        for k in range(npoll):
            a(f"global_load_dword v{R[k-1]}, v88, s[30:31] sc1")
            if npoll > 1: a("s_sleep 1")
            a(f"s_waitcnt vmcnt({npoll-1})")
            a(f"v_cmp_gt_u32 vcc, 10, v{R[k]}")
            a(f"s_cbranch_vccz {l1}" if k < npoll - 1 else f"s_cbranch_vccnz {l0}")
        a(f"""
        {l1}:
        s_mov_b64 exec, -1
        s_barrier
        """)
        a.vm = []
    a.vm = []
    a("L_role:\ns_cmp_eq_u32 s60, 3\ns_cbranch_scc1 L_out\ns_barrier\ns_cmp_eq_u32 s60, 2\ns_cbranch_scc1 L_D")
    for e in range(nex, 20): exdma(e)
    a(f"""
    v_lshrrev_b32 v54, 5, v1
    v_mul_u32_u24 v55, {2*ESTR}, v54
    v_and_b32 v54, 1, v53
    v_bfe_u32 v56, v1, 2, 2
    v_lshl_add_u32 v56, v54, 3, v56
    v_lshl_add_u32 v55, v56, 6, v55
    v_and_b32 v56, 3, v1
    v_lshl_add_u32 v55, v56, 3, v55
    v_add_u32 v55, s65, v55
    v_xor_b32 v56, 1, v54
    v_lshl_add_u32 v56, v56, 5, v55
    v_lshl_add_u32 v55, v54, 5, v55
    s_mul_i32 s58, s3, 5120
    s_add_u32 s58, s58, {ACC + 2048}
    v_lshl_add_u32 v92, v1, 4, s58
    s_mul_i32 s58, s3, 5120
    s_add_u32 s58, s58, {RP}
    v_lshl_add_u32 v57, v1, 4, s58
    v_lshrrev_b32 v82, 5, v0
    v_bfe_u32 v83, v0, 2, 3
    v_bfe_u32 v84, v0, 1, 1
    v_and_b32 v85, 1, v0
    v_lshlrev_b32 v59, 10, v84
    v_lshl_add_u32 v59, v82, 8, v59
    v_lshl_add_u32 v59, v85, 3, v59
    v_add_u32 v59, {RP}, v59
    v_lshl_add_u32 v58, v83, 4, v59
    v_add_u32 v59, 128, v59
    v_lshrrev_b32 v60, 2, v83
    v_lshlrev_b32 v60, 8, v60
    v_lshl_add_u32 v60, v83, 4, v60
    v_and_b32 v84, 3, v83
    v_lshl_add_u32 v60, v84, 2, v60
    v_add_u32 v60, {RP + 4096}, v60
    v_lshlrev_b32 v61, 4, v83
    v_add_u32 v61, {RP + 4096 + 512}, v61
    s_lshl_b32 s58, s61, 9
    s_add_u32 s58, s58, {HH}
    v_lshl_add_u32 v90, v0, 2, s58
    """)
    for r in range(62, 82): a(f"v_mov_b32 v{r}, 0x3f803f80")
    for s in range(5):
        a.vmwait(f"E{4*s+3}")
        for mu in range(2):
            for n in range(2):
                r = 96 + ((s*2 + mu)*2 + n) * 4
                off = (4*s + mu) * ESTR
                a(f"ds_read_b64_tr_b16 v[{r}:{r+1}], v{55+n} offset:{off}")
                a(f"ds_read_b64_tr_b16 v[{r+2}:{r+3}], v{55+n} offset:{off+256}")
    stamp(6)
    sigpoll()
    stamp(7)
    for s in range(5): a(f"global_load_dwordx4 v[{176+4*s}:{179+4*s}], v92, s[30:31] offset:{s*1024-2048} sc1", tag=f"h{s}")
    def prep(s):
        a.vmwait(f"h{s}", "lgkmcnt(0)" if s == 0 else "")
        t = 40 + 2 * (s % 2)
        a(f"v_cvt_pk_bf16_f32 v{t}, v{176+4*s}, v{177+4*s}")
        a(f"v_cvt_pk_bf16_f32 v{t+1}, v{178+4*s}, v{179+4*s}")
    def prep2(s):
        t = 40 + 2 * (s % 2); R = 62 + 4*s
        return [f"v_mov_b32_dpp v{R}, v{t} quad_perm:[0,1,2,3] row_mask:0xf bank_mask:0x3",
                f"v_mov_b32_dpp v{R+1}, v{t+1} quad_perm:[0,1,2,3] row_mask:0xf bank_mask:0x3",
                f"v_mov_b32_dpp v{R+2}, v{t} row_ror:8 row_mask:0xf bank_mask:0x3",
                f"v_mov_b32_dpp v{R+3}, v{t+1} row_ror:8 row_mask:0xf bank_mask:0x3"]
    def fm(s, k):
        R = 62 + 4*s
        d = 20 + 4*k
        c = "0" if s == 0 else f"v[{d}:{d+3}]"
        r = 96 + (s*4 + k) * 4 if k < 4 else R
        return f"v_mfma_f32_16x16x32_bf16 v[{d}:{d+3}], v[{r}:{r+3}], v[{R}:{R+3}], {c}"
    prep(0)
    stamp(8)
    a("\n".join(prep2(0)))
    for s in range(5):
        if s < 4:
            a(fm(s, 0)); prep(s + 1); a(fm(s, 1))
            p2 = prep2(s + 1)
            a(fm(s, 2)); a(p2[0]); a(p2[1]); a(fm(s, 3)); a(p2[2]); a(p2[3]); a(fm(s, 4))
        else:
            for k in range(5): a(fm(s, k))
    for k in range(5): a(f"ds_write_b128 v57, v[{20+4*k}:{23+4*k}] offset:{k*1024}")
    a("s_waitcnt lgkmcnt(0)\ns_barrier")
    stamp(9)
    a("s_cmp_gt_u32 s3, 1\ns_cbranch_scc1 L_out")
    a("""
    ds_read2st64_b32 v[20:21], v61 offset0:0 offset1:20
    ds_read2st64_b32 v[22:23], v61 offset0:40 offset1:60
    ds_read2st64_b32 v[24:25], v60 offset0:0 offset1:20
    ds_read2st64_b32 v[26:27], v60 offset0:40 offset1:60
    ds_read2st64_b64 v[62:65], v59 offset0:0 offset1:10
    ds_read2st64_b64 v[66:69], v59 offset0:20 offset1:30
    ds_read2st64_b64 v[70:73], v58 offset0:0 offset1:10
    ds_read2st64_b64 v[74:77], v58 offset0:20 offset1:30
    ds_read2st64_b64 v[96:99], v59 offset0:4 offset1:14
    ds_read2st64_b64 v[100:103], v59 offset0:24 offset1:34
    ds_read2st64_b64 v[104:107], v58 offset0:4 offset1:14
    ds_read2st64_b64 v[108:111], v58 offset0:24 offset1:34
    v_mov_b32 v30, 0x3727c5ac
    s_waitcnt lgkmcnt(8)
    v_pk_add_f32 v[20:21], v[20:21], v[22:23]
    v_pk_add_f32 v[24:25], v[24:25], v[26:27]
    v_add_f32 v20, v20, v21
    v_add_f32 v24, v24, v25
    v_mul_f32 v20, 0x3acccccd, v20
    v_mul_f32 v24, 0x3acccccd, v24
    v_fma_f32 v24, -v20, v20, v24
    v_max_f32 v24, 0, v24
    v_add_f32 v24, v24, v30
    v_rsq_f32 v24, v24
    v_mov_b32 v21, v20
    s_waitcnt lgkmcnt(4)
    v_pk_add_f32 v[62:63], v[62:63], v[64:65]
    v_pk_add_f32 v[66:67], v[66:67], v[68:69]
    v_pk_add_f32 v[70:71], v[70:71], v[72:73]
    v_pk_add_f32 v[74:75], v[74:75], v[76:77]
    v_pk_add_f32 v[62:63], v[62:63], v[66:67]
    v_pk_add_f32 v[70:71], v[70:71], v[74:75]
    v_mul_f32 v26, 0xbfb8aa3b, v24
    v_pk_fma_f32 v[70:71], v[62:63], v[20:21], v[70:71] neg_lo:[1,0,0] neg_hi:[1,0,0]
    v_mul_f32 v70, v70, v26
    v_mul_f32 v71, v71, v26
    v_exp_f32 v70, v70
    v_exp_f32 v71, v71
    s_waitcnt lgkmcnt(0)
    v_pk_add_f32 v[96:97], v[96:97], v[98:99]
    v_pk_add_f32 v[100:101], v[100:101], v[102:103]
    v_add_f32 v70, 1.0, v70
    v_add_f32 v71, 1.0, v71
    v_rcp_f32 v70, v70
    v_rcp_f32 v71, v71
    v_pk_add_f32 v[104:105], v[104:105], v[106:107]
    v_pk_add_f32 v[108:109], v[108:109], v[110:111]
    v_pk_add_f32 v[96:97], v[96:97], v[100:101]
    v_pk_add_f32 v[104:105], v[104:105], v[108:109]
    v_mul_f32 v70, v70, v24
    v_mul_f32 v71, v71, v24
    v_pk_fma_f32 v[104:105], v[96:97], v[20:21], v[104:105] neg_lo:[1,0,0] neg_hi:[1,0,0]
    v_pk_mul_f32 v[70:71], v[70:71], v[104:105]
    v_cvt_pk_bf16_f32 v70, v70, v71
    v_min_u32 v70, -2, v70
    global_store_dword v90, v70, s[30:31] sc1
    """)
    stamp(10)
    a("s_branch L_out")
    a.vm = []
    a("L_D:")
    for e in range(nex, 14): exdma(e)
    a(f"""
    v_lshl_add_u32 v55, v1, 3, s65
    s_add_u32 s52, s30, {HH}
    s_addc_u32 s53, s31, 0
    s_mov_b32 s54, 27648
    s_mov_b32 s55, 0x20000
    v_bfe_u32 v54, v1, 3, 1
    v_and_b32 v56, 7, v1
    v_lshlrev_b32 v57, 9, v54
    v_lshl_add_u32 v57, v53, 7, v57
    v_lshl_add_u32 v57, v56, 4, v57
    s_mul_i32 s58, s3, 7168
    v_add_u32 v57, s58, v57
    v_add_u32 v58, 4096, v57
    v_lshlrev_b32 v59, 6, v52
    v_lshl_add_u32 v59, v53, 4, v59
    s_lshl_b32 s58, s3, 10
    v_add_u32 v59, s58, v59
    v_lshlrev_b32 v60, 3, v1
    v_lshrrev_b32 v62, 3, v1
    v_mul_u32_u24 v61, 1280, v62
    v_lshl_add_u32 v61, v56, 2, v61
    s_lshl_b32 s58, s61, 5
    v_add_u32 v61, s58, v61
    s_lshl_b32 s58, s61, 9
    s_add_u32 s58, s58, {ACC}
    v_lshl_add_u32 v40, v62, 4, s58
    v_bfe_u32 v62, v1, 1, 2
    v_lshl_add_u32 v40, v62, 7, v40
    v_and_b32 v62, 1, v1
    v_lshl_add_u32 v40, v62, 3, v40
    s_mov_b32 s68, 0xff00ff00
    s_mov_b32 s69, 0xff00ff00
    """)
    for e in range(14):
        a.vmwait(f"E{e}")
        r = 96 + 4*e
        a(f"ds_read_b64_tr_b16 v[{r}:{r+1}], v55 offset:{e*ESTR}")
        a(f"ds_read_b64_tr_b16 v[{r+2}:{r+3}], v55 offset:{e*ESTR+512}")
    stamp(6)
    sigpoll()
    stamp(7)
    a("global_load_dwordx2 v[42:43], v40, s[30:31] sc1")
    l0, l1 = lab("dp"), lab("dd")
    a(f"s_mov_b32 s66, 0\n{l0}:")
    for p in range(7):
        a(f"buffer_load_dwordx4 v[{160+4*p}:{163+4*p}], v{57 + p//4}, s[52:55], 0 offen offset:{(p%4)*1024} sc1")
    a(f"s_add_u32 s66, s66, 1\ns_cmp_gt_u32 s66, {SPIN}\ns_cbranch_scc1 {l1}")
    for p in range(7):
        a(f"s_waitcnt vmcnt({6-p})")
        if p == 0: a("v_max3_u32 v56, v160, v161, v162\nv_max_u32 v56, v56, v163")
        else: a(f"v_max3_u32 v56, v56, v{160+4*p}, v{161+4*p}\nv_max3_u32 v56, v56, v{162+4*p}, v{163+4*p}")
    a(f"v_cmp_eq_u32 vcc, -1, v56\ns_cbranch_vccnz {l0}\n{l1}:\ns_waitcnt vmcnt(0) lgkmcnt(0)")
    stamp(8)
    for p in range(7):
        for y in range(2):
            r = 96 + 4 * (2*p + y)
            d = 20 + 4*y
            c = "0" if p == 0 else f"v[{d}:{d+3}]"
            a(f"v_mfma_f32_16x16x32_bf16 v[{d}:{d+3}], v[{r}:{r+3}], v[{160+4*p}:{163+4*p}], {c}")
    a("v_cvt_pk_bf16_f32 v42, v42, v43\nv_and_b32 v43, 0xffff0000, v42\nv_lshlrev_b32 v42, 16, v42")
    for r in range(4): a(f"v_cndmask_b32 v{20+r}, v{20+r}, v{24+r}, s[68:69]")
    a(f"ds_write_b128 v59, v[20:23] offset:{RP}")
    a("s_waitcnt lgkmcnt(0)\ns_barrier")
    stamp(9)
    a("s_cmp_lg_u32 s3, 0\ns_cbranch_scc1 L_out")
    for k in range(4): a(f"ds_read2st64_b64 v[{62+4*k}:{65+4*k}], v60 offset0:{RP//512 + 2*k} offset1:{RP//512 + 2*k+1}")
    a("""
    s_waitcnt lgkmcnt(0)
    v_pk_add_f32 v[62:63], v[62:63], v[64:65]
    v_pk_add_f32 v[66:67], v[66:67], v[68:69]
    v_pk_add_f32 v[70:71], v[70:71], v[72:73]
    v_pk_add_f32 v[74:75], v[74:75], v[76:77]
    v_pk_add_f32 v[62:63], v[62:63], v[66:67]
    v_pk_add_f32 v[70:71], v[70:71], v[74:75]
    v_pk_add_f32 v[62:63], v[62:63], v[70:71]
    v_cvt_pk_bf16_f32 v62, v62, v63
    v_and_b32 v63, 0xffff0000, v62
    v_lshlrev_b32 v62, 16, v62
    v_pk_add_f32 v[62:63], v[62:63], v[42:43]
    v_cvt_pk_bf16_f32 v62, v62, v63
    global_store_dword v61, v62, s[26:27]
    """)
    stamp(10)
    a("L_out:")
    if stamps:
        a("s_waitcnt vmcnt(0)")
        stamp(11)
        a(f"""
        s_getreg_b32 s94, hwreg(HW_REG_XCC_ID)
        s_lshr_b32 s58, s98, 14
        s_or_b32 s94, s94, s58
        s_mov_b32 s96, s60
        s_waitcnt lgkmcnt(0)
        s_lshl_b32 s58, s2, 2
        s_add_u32 s58, s58, s3
        s_lshl_b32 s58, s58, 6
        s_add_u32 s58, s58, {STAMP}
        v_mov_b32 v52, s58
        """)
        for i in range(14):
            a(f"v_mov_b32 v53, s{70+2*i}\nglobal_store_dword v52, v53, s[30:31] offset:{4*i}")
    a("L_end:\ns_endpgm")
    for c in cold:
        a.hist = []
        lines = [t.strip() for t in c.strip().split("\n") if t.strip()]
        a(lines[0]); a("s_nop 7")
        a("\n".join(lines[1:]))
    a.raw("L_pad:\n    s_endpgm\n.fill 1280, 4, 0xbf810000")
    a.raw('.section .rodata,"a"')
    a.raw(".p2align 6")
    a.raw(f".amdhsa_kernel {NAME}_kernel")
    a.raw("  .amdhsa_next_free_vgpr 512\n  .amdhsa_next_free_sgpr 102\n  .amdhsa_accum_offset 256")
    a.raw("  .amdhsa_group_segment_fixed_size 0\n  .amdhsa_kernarg_size 96\n  .amdhsa_user_sgpr_count 2")
    a.raw("  .amdhsa_user_sgpr_kernarg_segment_ptr 1\n  .amdhsa_system_sgpr_workgroup_id_x 1")
    a.raw("  .amdhsa_float_denorm_mode_32 3")
    a.raw(".end_amdhsa_kernel")
    return a.text()

if __name__ == "__main__":
    out = sys.argv[1] if len(sys.argv) > 1 else "cdna_kernels/" + NAME + ".s"
    kw = eval("dict(" + (sys.argv[2] if len(sys.argv) > 2 else "") + ")")
    open(out, "w").write(gen(**kw))
```

```python
import sys
sys.path.insert(0, "gen")
from asmlib import Asm
import numpy as np
NAME = "sequential_preLN__sliding_block_cached__glu_gated_glu__decode"
HEADER = open("cdna_kernels/" + NAME + ".s.ref").read().split("; Override launch")[0]

QP   = 0x000000
OS   = 0x080000
ZR   = 0x090000
ZS   = 7168
ACC  = ZR
SG   = ZR + 20480
SS   = 4608
PREO = 2048
FLGO = 4096
SLOW = 0x400000
HH   = 0x0A0000
STAMP = 0x100000
XN   = 0
SM   = 10752
WQL  = 16384
EXL  = 36864
ESTR = 1088
WSTR = 20 * ESTR
LDS_BYTES = EXL + 4 * WSTR
XSTR = 1312
SPIN = 1 << 16

def read_h(rd):
    return rd(np.float32, 5120, ACC).reshape(160, 8, 4).transpose(1, 0, 2).reshape(8, 640)
def read_o(rd, slow=0):
    o = rd(np.uint16, 32 * 8 * 128, OS + slow * SLOW).reshape(8, 2, 16, 2, 2, 4, 8)
    return o.transpose(5, 4, 1, 3, 0, 2, 6).reshape(8, 32, 128)

def gen(W=6, WR=7, W0=8, W0_until=12, WE=8, WE_from=116, nslot=12, ex_at=30, ex_every=8, nexD=5, nexF=8, nlate=3, lateF=True, spec=0, dspec=False, pubmode=2, wb=False, outpol='',
        x_at=10, wq_every=2, dbg_at=24, poll_gap=11, npoll=1, qk_per=2, pv_per=3, pf_start=False, pf_tail=True, pf_at=110,
        stamps=False, dbgdump=False, verbose=False, trace=False, amp2=None, forceslow=False, pin=None):
    a = Asm()
    a.raw(HEADER.rstrip())
    a.raw(f"; @launch grid=(256,1,1) block=(256,1,1) lds={LDS_BYTES}")
    a.raw('.amdgcn_target "amdgcn-amd-amdhsa--gfx950"')
    a.raw(".text")
    a.raw(f".globl {NAME}_kernel")
    a.raw(".p2align 8")
    a.raw(f".type {NAME}_kernel,@function")
    a.raw(f"{NAME}_kernel:")
    def stamp(i):
        if stamps: a(f"s_memrealtime s[{70+2*i}:{71+2*i}]")
    uid = [0]
    def lab(p):
        uid[0] += 1
        return f"L_{p}{uid[0]}"
    cold = []
    a("s_load_dwordx4 s[8:11], s[0:1], 0")
    stamp(0)
    if pin: a("s_memrealtime s[70:71]")
    a(f"""
    s_load_dwordx4 s[12:15], s[0:1], 16
    s_load_dwordx16 s[16:31], s[0:1], 32
    s_cmp_ge_u32 s2, 256
    s_cbranch_scc1 L_end
    v_lshlrev_b32 v2, 4, v0
    s_lshl_b32 s7, s2, 20
    s_add_u32 s7, s7, 0xC0000
    s_mov_b32 s34, 0x40000
    s_mov_b32 s35, 0x20000
    s_waitcnt lgkmcnt(0)
    s_add_u32 s32, s10, s7
    s_addc_u32 s33, s11, 0
    """)
    def kreg(i): return f"v[{96+4*i}:{99+4*i}]" if i < 40 else f"a[{4*(i-40)}:{4*(i-40)+3}]"
    def vreg(i): return f"a[{96+4*i}:{99+4*i}]" if i < 40 else f"a[{4*(i-40)}:{4*(i-40)+3}]"
    def wins(n):
        w = W
        if n < W0_until: w = W0
        if WE and n >= WE_from: w = WE
        wr = w + (WR - W)
        fr = lambda v: int(v) + (1 if (v - int(v)) > 0 and (n % 2) else 0)
        return fr(w), fr(wr)
    def window(n):
        w, wr = wins(n)
        def cnt(k):
            big = [i for i, t in enumerate(a.vm) if t and (t[0] in "KVE" or t == "wq")]
            if len(big) < k: return None
            return len(a.vm) - 1 - big[-k]
        c2 = cnt(w); c1 = cnt(wr)
        if c1 is not None: a(f"s_waitcnt vmcnt({c1})")
        if w != wr and c2 is not None:
            l = lab("w")
            a.raw(f"    s_cbranch_vccnz {l}")
            a.raw(f"    s_waitcnt vmcnt({c2})")
            a.raw(f"{l}:")
    def issue(n):
        i = n % 64
        a(f"s_mov_b32 s6, {i*4096}")
        if n < 64: a(f"buffer_load_dwordx4 {kreg(i)}, v2, s[32:35], s6 offen nt", tag=f"K{i}")
        else:      a(f"buffer_load_dwordx4 {vreg(i)}, v2, s[36:39], s6 offen nt", tag=f"V{i}")
    n0 = W0
    for n in range(n0 - 1): issue(n)
    lc = lab("lc")
    a(f"""
    v_lshrrev_b32 v52, 6, v0
    v_and_b32 v1, 63, v0
    v_readfirstlane_b32 s3, v52
    s_and_b32 s99, s2, 7
    s_mul_i32 s58, s99, {ZS}
    s_add_u32 s58, s58, {ZR}
    s_lshr_b32 s59, s2, 3
    s_or_b32 s59, s59, s3
    s_cbranch_scc1 {lc}
    v_add_u32 v52, s58, v2
    v_mov_b32 v56, 0
    v_mov_b32 v57, 0
    v_mov_b32 v58, 0
    v_mov_b32 v59, 0
    v_add_u32 v53, 4096, v52
    s_mul_i32 s59, s99, 3456
    s_add_u32 s59, s59, {HH}
    v_add_u32 v54, s59, v2
    v_mov_b32 v60, -1
    v_mov_b32 v61, -1
    v_mov_b32 v62, -1
    v_mov_b32 v63, -1
    """)
    for k in range(4): a(f"global_store_dwordx4 v52, v[56:59], s[30:31] offset:{k*1024} sc1", track=False)
    for k in range(3): a(f"global_store_dwordx4 v53, v[56:59], s[30:31] offset:{k*1024} sc1", track=False)
    for k in range(4): a(f"global_store_dwordx4 v54, v[60:63], s[30:31] offset:{k*1024} sc1", track=False)
    a(f"{lc}:")
    issue(n0 - 1)
    if stamps:
        for i in range(1, 14): a(f"s_mov_b32 s{70+2*i}, 0")
    a(f"""
    s_mul_i32 s58, s99, {SS}
    s_add_u32 s58, s58, {SG + FLGO}
    v_lshl_add_u32 v89, v1, 2, s58
    s_add_u32 s36, s12, s7
    s_addc_u32 s37, s13, 0
    s_lshr_b32 s4, s2, 5
    s_and_b32 s5, s2, 31
    v_lshrrev_b32 v52, 5, v0
    v_and_b32 v53, 31, v0
    v_mul_u32_u24 v37, 1280, v52
    v_lshl_add_u32 v37, v53, 3, v37
    v_mul_u32_u24 v91, {XSTR}, v52
    v_lshl_add_u32 v91, v53, 3, v91
    s_lshr_b32 s56, s4, 1
    s_and_b32 s57, s4, 1
    s_mul_i32 s58, s56, 160
    s_mul_i32 s59, s3, 40
    s_add_u32 s58, s58, s59
    v_lshrrev_b32 v52, 3, v1
    v_add_u32 v52, s58, v52
    v_lshlrev_b32 v52, 13, v52
    v_and_b32 v53, 7, v1
    v_lshl_add_u32 v52, v53, 4, v52
    s_lshl_b32 s58, s5, 8
    s_lshl_b32 s59, s57, 7
    s_add_u32 s58, s58, s59
    v_add_u32 v36, s58, v52
    s_mul_i32 s7, s3, 5120
    s_add_u32 s7, s7, {WQL}
    s_mov_b32 s38, 0x40000
    s_mov_b32 s39, 0x20000
    s_mov_b32 s42, 5242880
    s_mov_b32 s43, 0x20000
    s_mov_b32 s40, s14
    s_mov_b32 s41, s15
    """)
    a(f"""
    s_mul_i32 s58, s99, 12
    s_lshr_b32 s57, s5, 3
    s_mul_i32 s59, s57, 3
    s_add_u32 s58, s58, s59
    s_add_u32 s58, s58, s4
    s_sub_u32 s58, s58, 5
    s_sub_u32 s59, s58, 40
    s_cmp_lt_u32 s58, 40
    s_cselect_b32 s60, 2, 1
    s_cselect_b32 s61, s58, s59
    s_cmp_ge_u32 s58, 94
    s_cselect_b32 s60, 3, s60
    s_and_b32 s58, s57, 1
    s_lshl_b32 s59, s4, 1
    s_add_u32 s59, s59, s58
    s_cmp_lt_u32 s4, 5
    s_cselect_b32 s60, 0, s60
    s_cselect_b32 s61, s59, s61
    s_cselect_b64 vcc, 0, -1
    """)
    a(f"""
    s_lshr_b32 s55, s57, 1
    s_lshl_b32 s59, s99, 1
    s_add_u32 s55, s55, s59
    s_lshl_b32 s58, s58, 7
    s_and_b32 s59, s4, 1
    s_lshl_b32 s59, s59, 6
    s_add_u32 s58, s58, s59
    s_lshl_b32 s59, s56, 4
    s_add_u32 s58, s58, s59
    s_lshl_b32 s59, s55, 12
    s_add_u32 s58, s58, s59
    s_add_u32 s58, s58, {OS}
    v_and_b32 v52, 3, v1
    v_lshl_add_u32 v93, v52, 2, s58
    v_lshrrev_b32 v52, 2, v1
    v_lshl_add_u32 v93, v52, 8, v93
    """)
    def smask(k):
        assert k <= nslot
        m = 0
        for i in range(k): m |= 1 << ((2 * i + 1) * nslot // (2 * k))
        assert bin(m).count("1") == k
        return m
    def role_setup():
        lw, lf, lj = lab("rw"), lab("rf"), lab("rj")
        a(f"""
        s_mov_b32 s47, 0x20000
        s_mov_b64 s[48:49], 0
        s_mov_b32 s63, 0
        s_mov_b32 s64, 0
        s_mul_i32 s65, s3, {WSTR}
        s_add_u32 s65, s65, {EXL}
        s_mov_b32 s51, s65
        s_cmp_eq_u32 s60, 1
        s_cbranch_scc1 {lf}
        s_cmp_eq_u32 s60, 0
        s_cbranch_scc1 {lw}
        s_mov_b32 s44, s24
        s_mov_b32 s45, s25
        s_cmp_eq_u32 s60, 2
        s_cselect_b32 s46, 2211840, 0
        s_cselect_b32 s50, {smask(nexD)}, 0
        s_mov_b32 s62, 40960
        s_mul_i32 s58, s3, 448
        v_lshrrev_b32 v86, 1, v1
        v_add_u32 v86, s58, v86
        v_mul_u32_u24 v86, 1280, v86
        v_and_b32 v87, 1, v1
        v_lshl_add_u32 v86, v87, 4, v86
        s_lshl_b32 s58, s61, 5
        v_add_u32 v3, s58, v86
        s_branch {lj}
        {lf}:
        s_mov_b32 s44, s20
        s_mov_b32 s45, s21
        s_mov_b32 s46, 2211840
        s_xor_b64 s[48:49], s[20:21], s[22:23]
        s_mov_b32 s50, {smask(nexF)}
        s_mov_b32 s62, 0
        s_mov_b32 s63, 55296
        s_mul_i32 s58, s3, 160
        v_lshrrev_b32 v86, 2, v1
        v_add_u32 v86, s58, v86
        v_mul_u32_u24 v86, 3456, v86
        v_lshrrev_b32 v87, 4, v1
        v_and_b32 v87, 2, v87
        v_xor_b32 v87, v87, v1
        v_and_b32 v87, 3, v87
        v_lshl_add_u32 v86, v87, 4, v86
        s_lshl_b32 s58, s61, 6
        v_add_u32 v3, s58, v86
        s_branch {lj}
        {lw}:
        s_mov_b32 s44, s16
        s_mov_b32 s45, s17
        s_mov_b32 s46, 5242880
        s_mov_b32 s50, {smask(8 - nlate)}
        s_mov_b32 s62, 10240
        s_and_b32 s58, s5, 0x17
        s_lshr_b32 s59, s3, 1
        s_lshl_b32 s59, s59, 3
        s_add_u32 s58, s58, s59
        s_lshl_b32 s58, s58, 7
        s_and_b32 s59, s3, 1
        s_lshl_b32 s59, s59, 6
        s_add_u32 s58, s58, s59
        v_lshrrev_b32 v87, 3, v1
        v_add_u32 v86, s58, v87
        v_mul_u32_u24 v86, 1280, v86
        v_and_b32 v87, 2, v87
        v_xor_b32 v87, v87, v1
        v_and_b32 v87, 7, v87
        v_lshl_add_u32 v86, v87, 4, v86
        s_lshl_b32 s58, s61, 7
        v_add_u32 v3, s58, v86
        {lj}:
        """)
    def exdma(e, track=True):
        a("s_mov_b32 m0, s51")
        a(f"s_addk_i32 s51, {ESTR}")
        a(f"buffer_load_dwordx4 v3, s[44:47], s64 offen nt lds", tag=f"E{e}", track=track)
        a("s_add_u32 s64, s64, s62\ns_xor_b32 s62, s62, s63\ns_xor_b64 s[44:45], s[44:45], s[48:49]")
    def exslot(k):
        l = lab("xs")
        a(f"s_bitcmp1_b32 s50, {k}\ns_cbranch_scc0 {l}")
        h = list(a.hist)
        exdma(0, track=False)
        a.hist = h
        a(f"{l}:")
    def masks():
        a("""
        v_and_b32 v86, 1, v1
        v_mov_b32 v87, 0xffff
        v_lshlrev_b32 v86, 4, v86
        v_lshlrev_b32 v86, v86, v87
        v_bfe_u32 v87, v1, 1, 2
        """)
        for r in range(4):
            a(f"v_cmp_eq_u32 s[58:59], {r}, v87")
            a(f"v_cndmask_b32 v{4+r}, 0, v86, s[58:59]")
    def leader_flag():
        l = lab("lf")
        a(f"""
        s_getreg_b32 s98, hwreg(HW_REG_XCC_ID, 0, 4)
        s_add_u32 s98, s98, 1
        s_lshr_b32 s59, s2, 3
        s_or_b32 s59, s59, s3
        s_cbranch_scc1 {l}
        s_lshl_b32 s58, s99, 5
        v_mov_b32 v86, s58
        v_mov_b32 v87, s98
        s_mov_b64 exec, 1
        """)
        a("global_store_dword v86, v87, s[28:29] sc1", track=False)
        a(f"s_mov_b64 exec, -1\n{l}:")
    def prefetch_code(l0, sh, tag):
        lp = lab("pc")
        a(f"s_getpc_b64 s[58:59]")
        a.raw(f"{lp}:")
        if l0:
            a(f"s_add_u32 s58, s58, {l0}-{lp}")
            a("s_addc_u32 s59, s59, 0")
        a(f"v_lshlrev_b32 v84, {sh}, v0")
        a(f"global_load_dword v85, v84, s[58:59]", tag=tag)
    def xloads():
        for j in range(5):
            a(f"global_load_dwordx2 v[{52+2*j}:{53+2*j}], v37, s[8:9] offset:{j*256}", tag="x")
    def wqdma(e):
        a(f"s_add_u32 m0, s7, {e*1024}")
        a(f"s_mov_b32 s58, {e*65536}")
        a(f"buffer_load_dwordx4 v36, s[40:43], s58 offen nt lds", tag="wq")

    F = list(range(62, 82))
    def red32(r, t, op="v_add_f32"):
        o = [f"{op}_dpp v{r}, v{r}, v{r} row_ror:{k} row_mask:0xf bank_mask:0xf" for k in (8, 4, 2, 1)]
        o += [f"v_mov_b32 v{t}, v{r}", f"v_permlane16_swap_b32 v{r}, v{t}", f"{op} v{r}, v{r}, v{t}"]
        return o
    def red64(r, t, op):
        return red32(r, t, op) + [f"v_mov_b32 v{t}, v{r}", f"v_permlane32_swap_b32 v{r}, v{t}", f"{op} v{r}, v{r}, v{t}"]
    def rbf(r): return [f"v_cvt_pk_bf16_f32 v{r}, v{r}, v{r}", f"v_lshlrev_b32 v{r}, 16, v{r}"]
    def ln1_a():
        a.vmwait("x")
        for j in range(5):
            for t in range(2):
                a(f"v_lshlrev_b32 v{F[4*j+2*t]}, 16, v{52+2*j+t}")
                a(f"v_and_b32 v{F[4*j+2*t+1]}, 0xffff0000, v{52+2*j+t}")
    def ln1_a2():
        a(f"v_pk_add_f32 v[82:83], v[{F[0]}:{F[1]}], v[{F[2]}:{F[3]}]")
        for k in range(2, 10): a(f"v_pk_add_f32 v[82:83], v[82:83], v[{F[2*k]}:{F[2*k+1]}]")
        a("v_add_f32 v82, v82, v83")
        a("\n".join(red32(82, 83)))
        a("v_mul_f32 v82, 0x3acccccd, v82")
    def ln1_b():
        a("v_mov_b32 v84, 0\nv_mov_b32 v85, 0\nv_mov_b32 v83, v82")
        for k in range(10):
            a(f"v_pk_add_f32 v[86:87], v[{F[2*k]}:{F[2*k+1]}], v[82:83] neg_lo:[0,1] neg_hi:[0,1]")
            a(f"v_pk_fma_f32 v[84:85], v[86:87], v[86:87], v[84:85]")
    def ln1_b2():
        a("v_add_f32 v84, v84, v85")
        a("\n".join(red32(84, 85)))
        a("v_mul_f32 v84, 0x3acccccd, v84")
        a("\n".join(rbf(84)))
        a("v_add_f32 v84, 0x3727c5ac, v84")
        a("\n".join(rbf(84)))
        a("v_sqrt_f32 v84, v84")
        a("\n".join(rbf(84)))
        a("v_rcp_f32 v84, v84")
        a("\n".join(rbf(82)))
        a("v_mov_b32 v83, v82\nv_mov_b32 v85, v84")
    def ln1_c(js):
        def f():
            for j in js:
                for t in range(2):
                    k = 2 * j + t
                    x0, x1 = F[2*k], F[2*k+1]
                    a(f"v_pk_add_f32 v[{x0}:{x1}], v[{x0}:{x1}], v[82:83] neg_lo:[0,1] neg_hi:[0,1]")
                    a(f"v_cvt_pk_bf16_f32 v86, v{x0}, v{x1}")
                    a(f"v_lshlrev_b32 v{x0}, 16, v86")
                    a(f"v_and_b32 v{x1}, 0xffff0000, v86")
                    a(f"v_pk_mul_f32 v[{x0}:{x1}], v[{x0}:{x1}], v[84:85]")
                    a(f"v_cvt_pk_bf16_f32 v{52+k}, v{x0}, v{x1}")
                a(f"ds_write_b64 v91, v[{52+2*j}:{53+2*j}] offset:{XN + j*256}")
        return f
    def dbg_load():
        a("v_and_b32 v88, 7, v1\nv_lshlrev_b32 v88, 5, v88")
        a("global_load_dword v90, v88, s[28:29] sc1", tag="dbg")
    def dbg_chk():
        a.vmwait("dbg")
        l0, l1 = lab("dl"), lab("dd")
        a(f"""
        v_cmp_eq_u32 s[58:59], 0, v90
        s_cmp_lg_u32 s58, 0
        s_cbranch_scc1 {l0}
        {l1}:
        v_readlane_b32 s58, v90, s99
        s_cmp_lg_u32 s58, s98
        s_cselect_b32 s98, 1, {1 if forceslow else 0}
        """)
        l2 = lab("dx")
        cold.append(f"""
        {l0}:
        s_mov_b32 s57, 0
        {l2}:
        s_sleep 4
        global_load_dword v90, v88, s[28:29] sc1
        s_add_u32 s57, s57, 1
        s_waitcnt vmcnt(0)
        v_cmp_eq_u32 s[58:59], 0, v90
        s_cmp_gt_u32 s57, {SPIN}
        s_cbranch_scc1 {l1}
        s_cmp_lg_u32 s58, 0
        s_cbranch_scc1 {l2}
        s_branch {l1}
        """)
    def qgemm_0():
        a(f"""
        v_lshrrev_b32 v54, 4, v1
        v_bfe_u32 v55, v1, 2, 2
        v_lshl_add_u32 v55, v54, 3, v55
        v_lshlrev_b32 v52, 7, v55
        v_and_b32 v55, 3, v1
        v_lshl_add_u32 v52, v55, 3, v52
        s_lshl_b32 s58, s3, 5
        s_add_u32 s58, s58, {WQL}
        v_add_u32 v52, s58, v52
        v_and_b32 v55, 7, v1
        v_mul_u32_u24 v53, {XSTR}, v55
        v_lshl_add_u32 v53, v54, 4, v53
        s_mul_i32 s58, s56, 320
        v_add_u32 v53, s58, v53
        v_lshlrev_b32 v55, 11, v55
        v_lshl_add_u32 v54, v54, 4, v55
        s_lshl_b32 s58, s5, 14
        s_lshl_b32 s59, s4, 8
        s_add_u32 s58, s58, s59
        s_lshl_b32 s59, s3, 6
        s_add_u32 s58, s58, s59
        s_add_u32 s58, s58, {QP}
        v_add_u32 v54, s58, v54
        """)
    def qgemm_a():
        a.vmwait("wq", "lgkmcnt(0)")
        a("s_barrier")
        for s in range(5):
            a(f"ds_read_b64_tr_b16 v[{12+4*s}:{13+4*s}], v52 offset:{s*4096}")
            a(f"ds_read_b64_tr_b16 v[{14+4*s}:{15+4*s}], v52 offset:{s*4096+512}")
            a(f"ds_read_b128 v[{32+4*s}:{35+4*s}], v53 offset:{XN + s*64}")
    def qgemm_b():
        a("s_waitcnt lgkmcnt(0)")
        for s in range(5):
            c = "0" if s == 0 else "v[56:59]"
            a(f"v_mfma_f32_16x16x32_bf16 v[56:59], v[{12+4*s}:{15+4*s}], v[{32+4*s}:{35+4*s}], {c}")
        a(f"""
        s_mul_i32 s58, s99, {SS}
        s_lshr_b32 s59, s2, 3
        s_lshl_b32 s59, s59, 2
        s_add_u32 s58, s58, s59
        s_add_u32 s58, s58, s3
        s_add_u32 s58, s58, {SG + FLGO}
        v_mov_b32 v55, s58
        v_mov_b32 v60, -1
        v_mov_b32 v61, 1
        """)
    def qstores(pol, track):
        o = f"""
        s_lshl_b32 s58, s3, 4
        s_lshl_b64 exec, 0xffff, s58
        global_store_dword v93, v60, s[30:31] {pol}
        s_mov_b32 exec_lo, 0x00ff00ff
        s_mov_b32 exec_hi, 0x00ff00ff
        global_store_dwordx4 v54, v[56:59], s[30:31] {pol}
        s_mov_b64 exec, -1
        """
        return o
    def republish():
        return f"""
        s_mov_b32 s98, {SLOW}
        v_add_u32 v93, s98, v93
        v_add_u32 v54, s98, v54
        """ + qstores("sc1", False) + """
        s_waitcnt vmcnt(0)
        s_mov_b64 exec, 1
        global_store_byte v55, v61, s[30:31] offset:128 sc1
        s_mov_b64 exec, -1
        """
    def qstore():
        a(qstores("", True), tag="qst")
    def qflag():
        a.vmwait("qst")
        l0, l1 = lab("fs"), lab("fj")
        a(f"s_cmp_lg_u32 s98, 0\ns_cbranch_scc1 {l0}\ns_mov_b64 exec, 1")
        a("global_store_byte v55, v61, s[30:31]", tag="flag")
        a(f"s_mov_b64 exec, -1\n{l1}:")
        cold.append(f"{l0}:\n" + republish() + f"s_branch {l1}")
        stamp(1)
    def qpoll_a():
        a("global_load_dword v53, v89, s[30:31] sc1", tag="poll")
    def qpoll_b():
        a.vmwait("poll")
        l0, l1, l2, l3, l4 = lab("pl"), lab("pd"), lab("pl"), lab("pl"), lab("pl")
        a(f"""
        s_mov_b32 s66, 0x01010101
        v_cmp_ne_u32 s[58:59], s66, v53
        s_or_b32 s58, s58, s98
        s_cbranch_scc1 {l0}
        {l1}:
        """)
        cold.append(f"""
        {l0}:
        s_mov_b32 s57, 0
        {l2}:
        v_cmp_ne_u32 s[58:59], s66, v53
        v_cmp_ne_u32 s[68:69], 0, v53
        s_cmp_lg_u32 s98, 0
        s_cbranch_scc1 {l3}
        s_cmp_eq_u32 s58, 0
        s_cbranch_scc1 {l1}
        s_cmp_eq_u32 s69, 0
        s_cbranch_scc1 {l4}
        """ + republish() + f"""
        s_branch {l4}
        {l3}:
        s_cmp_eq_u32 s59, 0
        s_cbranch_scc1 {l1}
        {l4}:
        s_add_u32 s57, s57, 1
        s_cmp_gt_u32 s57, {SPIN}
        s_cbranch_scc1 {l1}
        s_sleep 2
        global_load_dword v53, v89, s[30:31] sc1
        s_waitcnt vmcnt(0)
        s_branch {l2}
        """)
        stamp(2)
        a(f"""
        v_lshrrev_b32 v52, 4, v1
        v_lshlrev_b32 v52, 9, v52
        v_and_b32 v53, 15, v1
        v_lshl_add_u32 v52, v53, 5, v52
        s_lshl_b32 s58, s5, 14
        s_lshl_b32 s59, s4, 11
        s_add_u32 s58, s58, s59
        s_add_u32 s58, s58, s98
        s_add_u32 s58, s58, {QP}
        v_add_u32 v52, s58, v52
        """)
        a("global_load_dwordx4 v[56:59], v52, s[30:31] sc1", tag="qg")
        a("global_load_dwordx4 v[60:63], v52, s[30:31] offset:16 sc1", tag="qg")
    def qfin0(sw):
        a.vmwait("qg")
        for r in range(8): a(f"v_mov_b32 v{64+r}, v{56+r}")
        for r in range(8): a(f"{sw} v{56+r}, v{64+r}")
        for r in range(8): a(f"v_add_f32 v{56+r}, v{56+r}, v{64+r}")
    def qfin():
        qfin0("v_permlane16_swap_b32")
        for r in range(4): a(f"v_cvt_pk_bf16_f32 v{8+r}, v{56+2*r}, v{57+2*r}")
        a("s_mov_b32 s66, 0xaaaaaaaa\ns_mov_b32 s67, 0xaaaaaaaa\ns_mov_b32 s68, 0xcccccccc\ns_mov_b32 s69, 0xcccccccc")
    P = list(range(36, 52))
    def qk(i0, cnt):
        def f():
            a.vmwait(f"K{i0+cnt-1}")
            srcs = []
            for i in range(i0, i0 + cnt):
                t = i % 16
                if i < 40: src = [96 + 4*i + r for r in range(4)]
                else:
                    base = 28 + 4 * (i % 2)
                    src = [base + r for r in range(4)]
                    for r in range(4): a(f"v_accvgpr_read_b32 v{base+r}, a{4*(i-40)+r}")
                srcs.append((t, src))
                a(f"v_mov_b32 v{P[t]}, 0")
                if len(srcs) == 2:
                    for r in range(4):
                        for (t2, s2) in srcs: a(f"v_dot2c_f32_bf16 v{P[t2]}, v{s2[r]}, v{8+r}")
                    srcs.clear()
        return f
    def qkred(m):
        def f():
            for t in range(8): a(f"v_add_f32_dpp v{P[t]}, v{P[t]}, v{P[t]} row_ror:8 row_mask:0xf bank_mask:0x3")
            for t in range(8): a(f"v_add_f32_dpp v{P[t]}, v{P[t+8]}, v{P[t+8]} row_ror:8 row_mask:0xf bank_mask:0xc")
            for t in range(4): a(f"v_add_f32_dpp v{P[t]}, v{P[t]}, v{P[t]} row_ror:12 row_mask:0xf bank_mask:0x5")
            for t in range(4): a(f"v_add_f32_dpp v{P[t]}, v{P[t+4]}, v{P[t+4]} row_ror:4 row_mask:0xf bank_mask:0xa")
            for t in range(4): a(f"v_add_f32_dpp v{P[t]}, v{P[t]}, v{P[t]} quad_perm:[1,0,3,2] row_mask:0xf bank_mask:0xf")
            for t in range(4): a(f"v_add_f32_dpp v{P[t]}, v{P[t]}, v{P[t]} quad_perm:[2,3,0,1] row_mask:0xf bank_mask:0xf")
            a(f"v_cndmask_b32 v{P[0]}, v{P[0]}, v{P[1]}, s[66:67]")
            a(f"v_cndmask_b32 v{P[2]}, v{P[2]}, v{P[3]}, s[66:67]")
            a(f"v_cndmask_b32 v{12+m}, v{P[0]}, v{P[2]}, s[68:69]")
        return f
    def softmax_a():
        a("v_cvt_pk_bf16_f32 v52, v12, v13\nv_cvt_pk_bf16_f32 v53, v14, v15")
        a("v_lshlrev_b32 v12, 16, v52\nv_and_b32 v13, 0xffff0000, v52\nv_lshlrev_b32 v14, 16, v53\nv_and_b32 v15, 0xffff0000, v53")
        for m in range(4): a(f"v_mul_f32 v{12+m}, 0x3db504f3, v{12+m}")
        a("v_cvt_pk_bf16_f32 v52, v12, v13\nv_cvt_pk_bf16_f32 v53, v14, v15")
        a("v_lshlrev_b32 v12, 16, v52\nv_and_b32 v13, 0xffff0000, v52\nv_lshlrev_b32 v14, 16, v53\nv_and_b32 v15, 0xffff0000, v53")
        if dbgdump:
            a(f"s_lshl_b32 s58, s2, 12\ns_lshl_b32 s59, s3, 10\ns_add_u32 s58, s58, s59\ns_add_u32 s58, s58, 0x200000\nv_lshl_add_u32 v54, v1, 2, s58")
            for m in range(4): a(f"global_store_dword v54, v{12+m}, s[30:31] offset:{m*256}", track=False)
        a("v_max_f32 v52, v12, v13\nv_max3_f32 v52, v52, v14, v15")
        a("\n".join(red64(52, 53, "v_max_f32")))
    def softmax_a2():
        for m in range(4): a(f"v_sub_f32 v{12+m}, v{12+m}, v52")
        for m in range(4): a(f"v_mul_f32 v{12+m}, 0x3fb8aa3b, v{12+m}")
        for m in range(4): a(f"v_exp_f32 v{12+m}, v{12+m}")
        a("v_add_f32 v53, v12, v13\nv_add_f32 v54, v14, v15\nv_add_f32 v53, v53, v54")
        a("\n".join(red64(53, 54, "v_add_f32")))
        a(f"s_lshl_b32 s58, s3, 3\nv_mov_b32 v54, s58\nds_write_b64 v54, v[52:53] offset:{SM}")
    def softmax_b0():
        a("s_waitcnt lgkmcnt(0)\ns_barrier\nv_mov_b32 v54, 0")
        a(f"ds_read_b128 v[56:59], v54 offset:{SM}\nds_read_b128 v[60:63], v54 offset:{SM+16}")
    def softmax_b():
        a("s_waitcnt lgkmcnt(0)")
        a("v_max_f32 v54, v56, v58\nv_max3_f32 v54, v54, v60, v62")
        for r in (56, 58, 60, 62, 52): a(f"v_sub_f32 v{r}, v{r}, v54")
        for r in (56, 58, 60, 62, 52): a(f"v_mul_f32 v{r}, 0x3fb8aa3b, v{r}")
        for r in (56, 58, 60, 62, 52): a(f"v_exp_f32 v{r}, v{r}")
        a("v_mul_f32 v54, v56, v57\nv_fmac_f32 v54, v58, v59\nv_fmac_f32 v54, v60, v61\nv_fmac_f32 v54, v62, v63")
        a("v_rcp_f32 v54, v54\nv_mul_f32 v52, v52, v54")
        for m in range(4): a(f"v_mul_f32 v{12+m}, v{12+m}, v52")
        for m in range(4): a(f"v_cvt_pk_bf16_f32 v{12+m}, v{12+m}, v{12+m}")
        build(0)
        stamp(3)
    def build(i):
        b = 20 + 4 * (i % 2)
        for r in range(4):
            a(f"v_and_b32_dpp v{b+r}, v{12 + i//16}, v{4+r} row_newbcast:{i%16} row_mask:0xf bank_mask:0xf")
    def pv(i):
        if i + 1 < 64: build(i + 1)
        a.vmwait(f"V{i}")
        b = 20 + 4 * (i % 2)
        c = "0" if i == 0 else "v[16:19]"
        a(f"v_mfma_f32_16x16x32_bf16 v[16:19], v[{b}:{b+3}], {vreg(i)}, {c}")
    def tail_pre_a():
        a(f"""
        v_and_b32 v52, 15, v1
        v_lshrrev_b32 v53, 4, v1
        v_and_b32 v56, 1, v53
        v_lshlrev_b32 v54, 5, v52
        v_lshl_add_u32 v54, v56, 4, v54
        s_lshl_b32 s58, s3, 9
        v_add_u32 v54, s58, v54
        v_lshlrev_b32 v55, 3, v1
        v_add_u32 v55, {SM + 64}, v55
        v_bfe_u32 v57, v1, 3, 1
        s_lshl_b32 s58, s55, 12
        s_add_u32 s58, s58, s98
        s_add_u32 s58, s58, {OS}
        v_lshl_add_u32 v36, v1, 4, s58
        v_mul_u32_u24 v37, {ESTR}, v53
        v_bfe_u32 v58, v1, 2, 2
        v_lshl_add_u32 v37, v58, 7, v37
        v_and_b32 v58, 3, v1
        v_lshl_add_u32 v37, v58, 3, v37
        v_xor_b32 v57, s3, v57
        v_lshl_add_u32 v37, v57, 5, v37
        v_add_u32 v37, {EXL}, v37
        v_add_u32 v38, {2*WSTR}, v37
        """)
    def tail_pre_b():
        l = lab("ci")
        a(f"""
        v_lshrrev_b32 v57, 5, v1
        s_lshl_b32 s58, s61, 6
        s_lshl_b32 s59, s3, 4
        s_add_u32 s58, s58, s59
        v_add_u32 v58, s58, v52
        s_lshl_b32 s58, s58, 5
        s_add_u32 s58, s58, {ACC}
        v_lshl_add_u32 v39, v52, 2, s58
        v_lshl_add_u32 v39, v57, 6, v39
        v_lshl_add_u32 v39, v56, 8, v39
        s_mul_i32 s58, s55, 10
        s_add_u32 s58, s58, s61
        s_and_b32 s58, s58, 15
        s_lshl_b32 s58, s58, 7
        s_add_u32 s58, s58, {SG}
        v_mul_u32_u24 v40, {SS}, v1
        v_add_u32 v40, s58, v40
        v_mov_b32 v41, 1
        s_add_u32 s59, s58, {PREO}
        s_lshr_b32 s58, s2, 3
        s_and_b32 s58, s58, 15
        s_lshl_b32 s58, s58, 7
        s_add_u32 s58, s58, {SG + PREO}
        {"s_mov_b32 s58, s59" if spec == 2 else ""}
        s_add_u32 s40, s30, s58
        s_addc_u32 s41, s31, 0
        v_mov_b32 v44, 0
        v_mov_b32 v45, 0
        v_mov_b32 v46, 0
        v_mov_b32 v47, 0
        s_or_b32 s58, s55, s60
        s_cbranch_scc1 {l}
        v_mul_u32_u24 v57, 1280, v56
        v_lshl_add_u32 v57, v58, 1, v57
        v_add_u32 v57, 3840, v57
        """)
        for r in range(4): a(f"global_load_short_d16_hi v{44+r}, v57, s[8:9] offset:{r*2560-3840}", track=False)
        a(f"{l}:")

    xa = max(x_at, n0)
    wqs = [xa + 1 + wq_every * e for e in range(5)]
    Q = []
    if pf_start: Q.append((0, None, lambda: prefetch_code(None, 6, "pf")))
    Q += [(0, None, role_setup), (0, None, masks)]
    Q += [(xa, None, xloads), (0, f"K{n0-1}", leader_flag), (0, "x", ln1_a)]
    Q += [(0, None, f) for f in (ln1_a2, ln1_b, ln1_b2)]
    Q += [(0, None, ln1_c([0])), (0, None, ln1_c([1, 2])), (0, None, ln1_c([3, 4])), (0, None, qgemm_0)]
    Q += [(wqs[-1] + 1, "wq", qgemm_a), (0, None, qgemm_b), (dbg_at, None, lambda: (qstore(), dbg_load())), (0, "dbg", lambda: (dbg_chk(), qflag()))]
    Q += [(-poll_gap, None, qpoll_a), (0, "poll", qpoll_b), (0, "qg", lambda: qfin0("v_permlane32_swap_b32")), (0, None, qfin)]
    kdone = [0]
    def mkqk(i):
        f = qk(i, qk_per)
        def g():
            f(); kdone[0] = i + qk_per
        return g
    for i in range(0, 64, qk_per):
        Q.append((i + qk_per, f"K{i+qk_per-1}", mkqk(i)))
        if (i + qk_per) % 16 == 0: Q.append((0, None, qkred((i + qk_per) // 16 - 1)))
    smb = [999]
    def smb_f():
        softmax_b(); smb[0] = cur[0]
    Q += [(0, None, softmax_a), (0, None, softmax_a2), (0, None, softmax_b0), (0, None, smb_f)]
    if pf_tail: Q.append((pf_at, None, lambda: prefetch_code("L_tail", 5, "pf")))
    Q += [(116, None, tail_pre_a), (0, None, tail_pre_b)]
    pvdone = [0]; exi = 0; cur = [0]; log = []; lastq = 0
    for n in range(n0, 128):
        cur[0] = n
        window(n)
        if trace:
            if n > n0:
                a("s_waitcnt lgkmcnt(0)")
                a(f"v_writelane_b32 v{94 + (n-1)//64}, s100, {(n-1)%64}")
            a("s_memrealtime s[100:101]")
        assert n < 104 or kdone[0] > n - 64
        issue(n)
        if n in wqs:
            window(n); wqdma(wqs.index(n))
        if n >= ex_at and (n - ex_at) % ex_every == 0 and exi < nslot and n < 127:
            exslot(exi); exi += 1
        if Q:
            mn, tg, f = Q[0]
            if mn < 0: mn = lastq - mn
            if mn <= n and (tg is None or tg not in a.vm):
                Q.pop(0); f(); lastq = n; log.append((n, getattr(f, "__name__", "?")))
        if n > smb[0]:
            c = 0
            while pvdone[0] <= n - 64 and f"V{pvdone[0]}" not in a.vm and c < pv_per:
                pv(pvdone[0]); pvdone[0] += 1; c += 1
    assert not Q, Q
    if verbose: print(log, "pv backlog", 64 - pvdone[0])
    assert exi == nslot
    if trace:
        a(f"""
        s_lshl_b32 s58, s2, 11
        s_lshl_b32 s59, s3, 9
        s_add_u32 s58, s58, s59
        s_add_u32 s58, s58, 0x300000
        v_lshl_add_u32 v57, v1, 2, s58
        """)
        a("global_store_dword v57, v94, s[30:31]", track=False)
        a("global_store_dword v57, v95, s[30:31] offset:256", track=False)
    a.raw("L_tail:")
    if nlate:
        a(f"s_cmp_ge_u32 s60, {2 if lateF else 1}\ns_cselect_b32 s46, 0, s46")
    for k in range(nlate):
        window(127); exdma(100 + k)
        while pvdone[0] < 64 and f"V{pvdone[0]}" not in a.vm:
            pv(pvdone[0]); pvdone[0] += 1
    while pvdone[0] < 64:
        pv(pvdone[0]); pvdone[0] += 1
    stamp(4)
    OP = SM + 64
    RP = WQL
    a(f"ds_write_b128 v54, v[16:19] offset:{OP}")
    a("s_waitcnt lgkmcnt(0)\ns_barrier")
    lp, ls, lq = lab("pub"), lab("pubs"), lab("pubq")
    if pubmode: a(f"s_cmp_lg_u32 s3, 0\ns_cbranch_scc1 {lq}")
    a(f"ds_read2st64_b64 v[56:59], v55 offset0:0 offset1:1\nds_read2st64_b64 v[60:63], v55 offset0:2 offset1:3")
    a(f"""
    s_waitcnt lgkmcnt(0)
    v_pk_add_f32 v[56:57], v[56:57], v[58:59]
    v_pk_add_f32 v[60:61], v[60:61], v[62:63]
    v_pk_add_f32 v[56:57], v[56:57], v[60:61]
    v_cvt_pk_bf16_f32 v56, v56, v57
    v_min_u32 v56, -2, v56
    s_cmp_lg_u32 s98, 0
    s_cbranch_scc1 {ls}
    """)
    a("global_store_dword v93, v56, s[30:31]", track=False)
    cold.append(f"{ls}:\nglobal_store_dword v93, v56, s[30:31] sc1\ns_branch {lq}")
    a(f"{lq}:")
    if pubmode == 2: a("s_barrier")
    def presig():
        lr = lab("pubr")
        a(f"s_cmp_lg_u32 s3, 1\ns_cbranch_scc1 {lr}")
        for r in range(3, 8): a(f"s_atomic_add s3, s[40:41], {r * SS}")
        a(f"{lr}:")
    if spec == 1: presig()
    stamp(5)
    a("s_cbranch_vccnz L_role")
    assert nlate <= 4
    def wtr(s):
        r = 96 + 4*s
        off = ((s >> 1) & 1) * WSTR + (s & 1) * 4 * ESTR
        a(f"ds_read_b64_tr_b16 v[{r}:{r+1}], v{37 + (s >> 2)} offset:{off}")
        a(f"ds_read_b64_tr_b16 v[{r+2}:{r+3}], v{37 + (s >> 2)} offset:{off + 512}")
    l0, l1, l2 = lab("wp"), lab("wd"), lab("we")
    for s in range(4): a(f"global_load_dwordx4 v[{64+4*s}:{67+4*s}], v36, s[30:31] offset:{s*1024} sc1")
    for s in (0, 2, 4, 6): wtr(s)
    a(f"s_mov_b32 s66, 0\ns_mov_b32 s68, 0\ns_mov_b32 s69, -1")
    if nlate: a(f"s_waitcnt vmcnt({4 if pubmode else 5})\ns_barrier")
    for s in (1, 3, 5, 7): wtr(s)
    a(f"s_branch {l2}")
    a(f"{l0}:")
    for s in range(4): a(f"global_load_dwordx4 v[{64+4*s}:{67+4*s}], v36, s[30:31] offset:{s*1024} sc1")
    a(f"{l2}:")
    a(f"s_add_u32 s66, s66, 1\ns_cmp_gt_u32 s66, {SPIN}\ns_cbranch_scc1 {l1}")
    for s in range(4):
        a(f"s_waitcnt vmcnt({3-s})")
        if s == 0: a("v_max3_u32 v56, v64, v65, v66\nv_max_u32 v56, v56, v67")
        else: a(f"v_max3_u32 v56, v56, v{64+4*s}, v{65+4*s}\nv_max3_u32 v56, v56, v{66+4*s}, v{67+4*s}")
    a(f"v_cmp_eq_u32 vcc, -1, v56\ns_cbranch_vccnz {l0}\n{l1}:\ns_waitcnt vmcnt(0) lgkmcnt(0)")
    stamp(6)
    if spec == 2: presig()
    for s in range(4):
        a(f"v_mfma_f32_16x16x32_bf16 v[44:47], v[{64+4*s}:{67+4*s}], v[{96+4*s}:{99+4*s}], v[44:47]")
        c = "0" if s == 0 else "v[48:51]"
        a(f"v_mfma_f32_16x16x32_bf16 v[48:51], v[{64+4*s}:{67+4*s}], v[{112+4*s}:{115+4*s}], {c}")
    a("""
    v_permlane32_swap_b32 v48, v46
    v_permlane32_swap_b32 v49, v47
    v_cndmask_b32 v44, v44, v50, s[68:69]
    v_cndmask_b32 v45, v45, v51, s[68:69]
    v_cndmask_b32 v46, v46, v48, s[68:69]
    v_cndmask_b32 v47, v47, v49, s[68:69]
    v_add_f32 v45, v45, v47
    v_add_f32 v48, v44, v46
    v_add_f32 v44, v44, v46
    v_mov_b32_dpp v44, v45 row_ror:8 row_mask:0xf bank_mask:0xc
    v_mov_b32_dpp v45, v48 row_ror:8 row_mask:0xf bank_mask:0x3
    v_permlane16_swap_b32 v44, v45
    v_mov_b32 v48, v44
    v_mov_b32_dpp v44, v45 row_ror:4 row_mask:0xf bank_mask:0xa
    v_mov_b32_dpp v45, v48 row_ror:12 row_mask:0xf bank_mask:0x5
    """)
    a(f"global_atomic_add_f32 v39, v44, s[30:31]")
    a(f"global_atomic_add_f32 v39, v45, s[30:31] offset:128")
    a("s_waitcnt vmcnt(0)\ns_barrier")
    stamp(7)
    a("s_cmp_lg_u32 s3, 0\ns_cbranch_scc1 L_out\ns_mov_b64 exec, 0xff")
    a("global_atomic_add v40, v41, s[30:31]")
    a("s_mov_b64 exec, -1")
    if wb:
        a("s_and_b32 s58, s55, 1\ns_or_b32 s58, s58, s61\ns_cbranch_scc1 L_out\nbuffer_wbl2 sc1")
    a("s_branch L_out")

    def sigpoll(off=0, full=10, wave=0):
        l0, l1 = lab("sp"), lab("sd")
        a(f"""
        s_mul_i32 s58, s99, {SS}
        s_add_u32 s58, s58, {SG + off}
        v_lshl_add_u32 v88, v52, 7, s58
        s_mov_b32 s66, 0
        s_cmp_lg_u32 s3, {wave}
        s_cbranch_scc1 {l1}
        s_mov_b64 exec, 0xffff
        """)
        R = [89, 87, 86][:npoll]
        for r in R[:-1]: a(f"global_load_dword v{r}, v88, s[30:31] sc1\ns_sleep 1")
        a(f"{l0}:\ns_add_u32 s66, s66, 1\ns_cmp_gt_u32 s66, {SPIN}\ns_cbranch_scc1 {l1}")
        for k in range(npoll):
            a(f"global_load_dword v{R[k-1]}, v88, s[30:31] sc1")
            if npoll > 1: a("s_sleep 1")
            a(f"s_waitcnt vmcnt({npoll-1})")
            a(f"v_cmp_gt_u32 vcc, {full}, v{R[k]}")
            a(f"s_cbranch_vccz {l1}" if k < npoll - 1 else f"s_cbranch_vccnz {l0}")
        a(f"""
        {l1}:
        s_mov_b64 exec, -1
        s_barrier
        """)
        a.vm = []
    a.vm = []
    a("L_role:\ns_cmp_eq_u32 s60, 3\ns_cbranch_scc1 L_out\n" + ("s_barrier\n" if pubmode == 1 else "") + "s_cmp_eq_u32 s60, 2\ns_cbranch_scc1 L_D")
    eF = nexF + (nlate if lateF else 0)
    if lateF:
        a.vm = [f"E{e}" for e in range(nexF, eF)]
    else:
        a(f"s_mov_b32 s46, 2211840\ns_mov_b32 s64, {(eF // 2) * 55296}\ns_add_u32 s51, s65, {eF * ESTR}\ns_mov_b32 s62, {(eF % 2) * 55296}")
        a(f"s_mov_b64 s[44:45], s[{20 + 2 * (eF % 2)}:{21 + 2 * (eF % 2)}]")
    for e in range(eF, 20): exdma(e)
    a(f"""
    v_lshrrev_b32 v54, 5, v1
    v_mul_u32_u24 v55, {2*ESTR}, v54
    v_and_b32 v54, 1, v53
    v_bfe_u32 v56, v1, 2, 2
    v_lshl_add_u32 v56, v54, 3, v56
    v_lshl_add_u32 v55, v56, 6, v55
    v_and_b32 v56, 3, v1
    v_lshl_add_u32 v55, v56, 3, v55
    v_add_u32 v55, s65, v55
    v_xor_b32 v56, 1, v54
    v_lshl_add_u32 v56, v56, 5, v55
    v_lshl_add_u32 v55, v54, 5, v55
    s_mul_i32 s58, s3, 5120
    s_add_u32 s58, s58, {ACC + 2048}
    v_lshl_add_u32 v92, v1, 4, s58
    s_mul_i32 s58, s3, 5120
    s_add_u32 s58, s58, {RP}
    v_lshl_add_u32 v57, v1, 4, s58
    v_lshrrev_b32 v82, 5, v0
    v_bfe_u32 v83, v0, 2, 3
    v_bfe_u32 v84, v0, 1, 1
    v_and_b32 v85, 1, v0
    v_lshlrev_b32 v59, 10, v84
    v_lshl_add_u32 v59, v82, 8, v59
    v_lshl_add_u32 v59, v85, 3, v59
    v_add_u32 v59, {RP}, v59
    v_lshl_add_u32 v58, v83, 4, v59
    v_add_u32 v59, 128, v59
    v_lshrrev_b32 v60, 2, v83
    v_lshlrev_b32 v60, 8, v60
    v_lshl_add_u32 v60, v83, 4, v60
    v_and_b32 v84, 3, v83
    v_lshl_add_u32 v60, v84, 2, v60
    v_add_u32 v60, {RP + 4096}, v60
    v_lshlrev_b32 v61, 4, v83
    v_add_u32 v61, {RP + 4096 + 512}, v61
    s_lshl_b32 s58, s61, 9
    s_add_u32 s58, s58, {HH}
    v_lshl_add_u32 v90, v0, 2, s58
    """)
    for r in range(62, 82): a(f"v_mov_b32 v{r}, 0x3f803f80")
    for s in range(5):
        a.vmwait(f"E{4*s+3}")
        for mu in range(2):
            for n in range(2):
                r = 96 + ((s*2 + mu)*2 + n) * 4
                off = (4*s + mu) * ESTR
                a(f"ds_read_b64_tr_b16 v[{r}:{r+1}], v{55+n} offset:{off}")
                a(f"ds_read_b64_tr_b16 v[{r+2}:{r+3}], v{55+n} offset:{off+256}")
    a(f"v_mov_b32 v91, 0\nv_mov_b32 v93, 1\nds_write_b32 v91, v91 offset:{SM}\ns_mov_b32 s67, 0")
    stamp(6)
    if spec: sigpoll(PREO, 16 if spec == 1 else 10)
    else: sigpoll()
    stamp(7)
    a("L_spec:")
    for s in range(5): a(f"global_load_dwordx4 v[{176+4*s}:{179+4*s}], v92, s[30:31] offset:{s*1024-2048} sc1", tag=f"h{s}")
    def prep(s):
        a.vmwait(f"h{s}", "lgkmcnt(0)" if s == 0 else "")
        t = 40 + 2 * (s % 2)
        a(f"v_cvt_pk_bf16_f32 v{t}, v{176+4*s}, v{177+4*s}")
        a(f"v_cvt_pk_bf16_f32 v{t+1}, v{178+4*s}, v{179+4*s}")
    def prep2(s):
        t = 40 + 2 * (s % 2); R = 62 + 4*s
        return [f"v_mov_b32_dpp v{R}, v{t} quad_perm:[0,1,2,3] row_mask:0xf bank_mask:0x3",
                f"v_mov_b32_dpp v{R+1}, v{t+1} quad_perm:[0,1,2,3] row_mask:0xf bank_mask:0x3",
                f"v_mov_b32_dpp v{R+2}, v{t} row_ror:8 row_mask:0xf bank_mask:0x3",
                f"v_mov_b32_dpp v{R+3}, v{t+1} row_ror:8 row_mask:0xf bank_mask:0x3"]
    def fm(s, k):
        R = 62 + 4*s
        d = 20 + 4*k
        c = "0" if s == 0 else f"v[{d}:{d+3}]"
        r = 96 + (s*4 + k) * 4 if k < 4 else R
        return f"v_mfma_f32_16x16x32_bf16 v[{d}:{d+3}], v[{r}:{r+3}], v[{R}:{R+3}], {c}"
    prep(0)
    stamp(8)
    a("\n".join(prep2(0)))
    for s in range(5):
        if s < 4:
            a(fm(s, 0)); prep(s + 1); a(fm(s, 1))
            p2 = prep2(s + 1)
            a(fm(s, 2)); a(p2[0]); a(p2[1]); a(fm(s, 3)); a(p2[2]); a(p2[3]); a(fm(s, 4))
        else:
            for k in range(5): a(fm(s, k))
    for k in range(5): a(f"ds_write_b128 v57, v[{20+4*k}:{23+4*k}] offset:{k*1024}")
    a("s_waitcnt lgkmcnt(0)\ns_barrier")
    if not spec: stamp(9)
    a("s_cmp_gt_u32 s3, 1\ns_cbranch_scc1 " + ("L_fver" if spec else "L_out"))
    a("""
    ds_read2st64_b32 v[20:21], v61 offset0:0 offset1:20
    ds_read2st64_b32 v[22:23], v61 offset0:40 offset1:60
    ds_read2st64_b32 v[24:25], v60 offset0:0 offset1:20
    ds_read2st64_b32 v[26:27], v60 offset0:40 offset1:60
    ds_read2st64_b64 v[232:235], v59 offset0:0 offset1:10
    ds_read2st64_b64 v[236:239], v59 offset0:20 offset1:30
    ds_read2st64_b64 v[240:243], v58 offset0:0 offset1:10
    ds_read2st64_b64 v[244:247], v58 offset0:20 offset1:30
    ds_read2st64_b64 v[216:219], v59 offset0:4 offset1:14
    ds_read2st64_b64 v[220:223], v59 offset0:24 offset1:34
    ds_read2st64_b64 v[224:227], v58 offset0:4 offset1:14
    ds_read2st64_b64 v[228:231], v58 offset0:24 offset1:34
    v_mov_b32 v30, 0x3727c5ac
    s_waitcnt lgkmcnt(8)
    v_pk_add_f32 v[20:21], v[20:21], v[22:23]
    v_pk_add_f32 v[24:25], v[24:25], v[26:27]
    v_add_f32 v20, v20, v21
    v_add_f32 v24, v24, v25
    v_mul_f32 v20, 0x3acccccd, v20
    v_mul_f32 v24, 0x3acccccd, v24
    v_fma_f32 v24, -v20, v20, v24
    v_max_f32 v24, 0, v24
    v_add_f32 v24, v24, v30
    v_rsq_f32 v24, v24
    v_mov_b32 v21, v20
    s_waitcnt lgkmcnt(4)
    v_pk_add_f32 v[232:233], v[232:233], v[234:235]
    v_pk_add_f32 v[236:237], v[236:237], v[238:239]
    v_pk_add_f32 v[240:241], v[240:241], v[242:243]
    v_pk_add_f32 v[244:245], v[244:245], v[246:247]
    v_pk_add_f32 v[232:233], v[232:233], v[236:237]
    v_pk_add_f32 v[240:241], v[240:241], v[244:245]
    v_mul_f32 v26, 0xbfb8aa3b, v24
    v_pk_fma_f32 v[240:241], v[232:233], v[20:21], v[240:241] neg_lo:[1,0,0] neg_hi:[1,0,0]
    v_mul_f32 v240, v240, v26
    v_mul_f32 v241, v241, v26
    v_exp_f32 v240, v240
    v_exp_f32 v241, v241
    s_waitcnt lgkmcnt(0)
    v_pk_add_f32 v[216:217], v[216:217], v[218:219]
    v_pk_add_f32 v[220:221], v[220:221], v[222:223]
    v_add_f32 v240, 1.0, v240
    v_add_f32 v241, 1.0, v241
    v_rcp_f32 v240, v240
    v_rcp_f32 v241, v241
    v_pk_add_f32 v[224:225], v[224:225], v[226:227]
    v_pk_add_f32 v[228:229], v[228:229], v[230:231]
    v_pk_add_f32 v[216:217], v[216:217], v[220:221]
    v_pk_add_f32 v[224:225], v[224:225], v[228:229]
    v_mul_f32 v240, v240, v24
    v_mul_f32 v241, v241, v24
    v_pk_fma_f32 v[224:225], v[216:217], v[20:21], v[224:225] neg_lo:[1,0,0] neg_hi:[1,0,0]
    v_pk_mul_f32 v[240:241], v[240:241], v[224:225]
    v_cvt_pk_bf16_f32 v240, v240, v241
    v_min_u32 v240, -2, v240
    """)
    if spec:
        lm, lok = lab("fm"), lab("fok")
        a(f"L_fver:\ns_cmp_lg_u32 s67, 0\ns_cbranch_scc1 {lok}")
        sigpoll(0, 10, 3)
        stamp(9)
        for s in range(5): a(f"global_load_dwordx4 v[{196+4*s}:{199+4*s}], v92, s[30:31] offset:{s*1024-2048} sc1", tag=f"g{s}")
        for s in range(5):
            a.vmwait(f"g{s}")
            a(f"v_cmpx_eq_u64 vcc, v[{176+4*s}:{177+4*s}], v[{196+4*s}:{197+4*s}]")
            a(f"v_cmpx_eq_u64 vcc, v[{178+4*s}:{179+4*s}], v[{198+4*s}:{199+4*s}]")
        a(f"""
        s_cmp_eq_u64 vcc, -1
        s_mov_b64 exec, -1
        s_cbranch_scc1 {lm}
        ds_write_b32 v91, v93 offset:{SM}
        s_waitcnt lgkmcnt(0)
        {lm}:
        s_barrier
        ds_read_b32 v94, v91 offset:{SM}
        s_waitcnt lgkmcnt(0)
        v_cmp_ne_u32 vcc, 0, v94
        s_mov_b32 s67, 1
        s_cbranch_vccnz L_spec
        s_mov_b32 s67, 0
        {lok}:
        s_cmp_gt_u32 s3, 1
        s_cbranch_scc1 L_out
        """)
    a("""
    global_store_dword v90, v240, s[30:31] sc1
    """)
    stamp(10)
    a("s_branch L_out")
    a.vm = []
    a("L_D:")
    a(f"s_mov_b32 s46, 2211840\ns_mov_b32 s64, {nexD * 40960}\ns_add_u32 s51, s65, {nexD * ESTR}")
    for e in range(nexD, 14): exdma(e)
    a(f"""
    v_lshl_add_u32 v55, v1, 3, s65
    s_add_u32 s52, s30, {HH}
    s_addc_u32 s53, s31, 0
    s_mov_b32 s54, 27648
    s_mov_b32 s55, 0x20000
    v_bfe_u32 v54, v1, 3, 1
    v_and_b32 v56, 7, v1
    v_lshlrev_b32 v57, 9, v54
    v_lshl_add_u32 v57, v53, 7, v57
    v_lshl_add_u32 v57, v56, 4, v57
    s_mul_i32 s58, s3, 7168
    v_add_u32 v57, s58, v57
    v_add_u32 v58, 4096, v57
    v_lshlrev_b32 v59, 6, v52
    v_lshl_add_u32 v59, v53, 4, v59
    s_lshl_b32 s58, s3, 10
    v_add_u32 v59, s58, v59
    v_lshlrev_b32 v60, 3, v1
    v_lshrrev_b32 v62, 3, v1
    v_mul_u32_u24 v61, 1280, v62
    v_lshl_add_u32 v61, v56, 2, v61
    s_lshl_b32 s58, s61, 5
    v_add_u32 v61, s58, v61
    s_lshl_b32 s58, s61, 9
    s_add_u32 s58, s58, {ACC}
    v_lshl_add_u32 v40, v62, 4, s58
    v_bfe_u32 v62, v1, 1, 2
    v_lshl_add_u32 v40, v62, 7, v40
    v_and_b32 v62, 1, v1
    v_lshl_add_u32 v40, v62, 3, v40
    s_mov_b32 s68, 0xff00ff00
    s_mov_b32 s69, 0xff00ff00
    """)
    for e in range(14):
        a.vmwait(f"E{e}")
        r = 96 + 4*e
        a(f"ds_read_b64_tr_b16 v[{r}:{r+1}], v55 offset:{e*ESTR}")
        a(f"ds_read_b64_tr_b16 v[{r+2}:{r+3}], v55 offset:{e*ESTR+512}")
    stamp(6)
    sigpoll()
    stamp(7)
    def dm(p):
        for y in range(2):
            r = 96 + 4 * (2*p + y)
            d = 20 + 4*y
            c = "0" if p == 0 else f"v[{d}:{d+3}]"
            a(f"v_mfma_f32_16x16x32_bf16 v[{d}:{d+3}], v[{r}:{r+3}], v[{160+4*p}:{163+4*p}], {c}")
    a("global_load_dwordx2 v[42:43], v40, s[30:31] sc1\ns_waitcnt lgkmcnt(0)")
    l0, l1 = lab("dp"), lab("dd")
    a(f"s_mov_b32 s66, 0\n{l0}:")
    for p in range(7):
        a(f"buffer_load_dwordx4 v[{160+4*p}:{163+4*p}], v{57 + p//4}, s[52:55], 0 offen offset:{(p%4)*1024} sc1")
    a(f"s_add_u32 s66, s66, 1\ns_cmp_gt_u32 s66, {SPIN}\ns_cbranch_scc1 {l1}")
    for p in range(7):
        a(f"s_waitcnt vmcnt({6-p})")
        if p == 0: a("v_max3_u32 v56, v160, v161, v162\nv_max_u32 v56, v56, v163")
        else: a(f"v_max3_u32 v56, v56, v{160+4*p}, v{161+4*p}\nv_max3_u32 v56, v56, v{162+4*p}, v{163+4*p}")
        if dspec: dm(p)
    a(f"v_cmp_eq_u32 vcc, -1, v56\ns_cbranch_vccnz {l0}\n{l1}:\ns_waitcnt vmcnt(0)")
    stamp(8)
    if not dspec:
        for p in range(7): dm(p)
    a("v_cvt_pk_bf16_f32 v42, v42, v43\nv_and_b32 v43, 0xffff0000, v42\nv_lshlrev_b32 v42, 16, v42")
    for r in range(4): a(f"v_cndmask_b32 v{20+r}, v{20+r}, v{24+r}, s[68:69]")
    a(f"ds_write_b128 v59, v[20:23] offset:{RP}")
    a("s_waitcnt lgkmcnt(0)\ns_barrier")
    stamp(9)
    a("s_cmp_lg_u32 s3, 0\ns_cbranch_scc1 L_out")
    for k in range(4): a(f"ds_read2st64_b64 v[{62+4*k}:{65+4*k}], v60 offset0:{RP//512 + 2*k} offset1:{RP//512 + 2*k+1}")
    a("""
    s_waitcnt lgkmcnt(0)
    v_pk_add_f32 v[62:63], v[62:63], v[64:65]
    v_pk_add_f32 v[66:67], v[66:67], v[68:69]
    v_pk_add_f32 v[70:71], v[70:71], v[72:73]
    v_pk_add_f32 v[74:75], v[74:75], v[76:77]
    v_pk_add_f32 v[62:63], v[62:63], v[66:67]
    v_pk_add_f32 v[70:71], v[70:71], v[74:75]
    v_pk_add_f32 v[62:63], v[62:63], v[70:71]
    v_cvt_pk_bf16_f32 v62, v62, v63
    v_and_b32 v63, 0xffff0000, v62
    v_lshlrev_b32 v62, 16, v62
    v_pk_add_f32 v[62:63], v[62:63], v[42:43]
    v_cvt_pk_bf16_f32 v62, v62, v63
    """)
    a(f"global_store_dword v61, v62, s[26:27] {outpol}")
    stamp(10)
    a("L_out:")
    if stamps:
        a("s_waitcnt vmcnt(0)")
        stamp(11)
        a(f"""
        s_getreg_b32 s94, hwreg(HW_REG_XCC_ID)
        s_lshr_b32 s58, s98, 14
        s_or_b32 s94, s94, s58
        s_and_b32 s58, s67, 1
        s_lshl_b32 s58, s58, 9
        s_or_b32 s94, s94, s58
        s_mov_b32 s96, s60
        s_waitcnt lgkmcnt(0)
        s_lshl_b32 s58, s2, 2
        s_add_u32 s58, s58, s3
        s_lshl_b32 s58, s58, 6
        s_add_u32 s58, s58, {STAMP}
        v_mov_b32 v52, s58
        """)
        for i in range(14):
            a(f"v_mov_b32 v53, s{70+2*i}\nglobal_store_dword v52, v53, s[30:31] offset:{4*i}")
    if pin:
        l0 = lab("pin")
        if "dirty" in pin:
            a("s_lshl_b32 s58, s2, 15\ns_add_u32 s58, s58, 0x1000000\nv_add_u32 v52, s58, v2")
            for k in range(8): a("global_store_dwordx4 v52, v[56:59], s[30:31]\nv_add_u32 v52, 4096, v52")
        if "wb" in pin:
            a("s_waitcnt vmcnt(0)\nbuffer_wbl2 sc1\ns_waitcnt vmcnt(0)")
        if "all" not in pin:
            a("""
            s_cmp_lg_u32 s60, 2
            s_cbranch_scc1 L_end
            s_cmp_lg_u32 s61, 0
            s_cbranch_scc1 L_end
            s_cmp_lg_u32 s3, 0
            s_cbranch_scc1 L_end
            """)
        a(f"""
        s_add_u32 s58, s70, 4000
        {l0}:
        s_memrealtime s[66:67]
        s_waitcnt lgkmcnt(0)
        s_sub_u32 s59, s66, s58
        s_cmp_lt_i32 s59, 0
        s_cbranch_scc1 {l0}
        """)
    a("L_end:\ns_endpgm")
    for c in cold:
        a.hist = []
        lines = [t.strip() for t in c.strip().split("\n") if t.strip()]
        a(lines[0]); a("s_nop 7")
        a("\n".join(lines[1:]))
    a.raw("L_pad:\n    s_endpgm\n.fill 1280, 4, 0xbf810000")
    a.raw('.section .rodata,"a"')
    a.raw(".p2align 6")
    a.raw(f".amdhsa_kernel {NAME}_kernel")
    a.raw("  .amdhsa_next_free_vgpr 512\n  .amdhsa_next_free_sgpr 102\n  .amdhsa_accum_offset 256")
    a.raw("  .amdhsa_group_segment_fixed_size 0\n  .amdhsa_kernarg_size 96\n  .amdhsa_user_sgpr_count 2")
    a.raw("  .amdhsa_user_sgpr_kernarg_segment_ptr 1\n  .amdhsa_system_sgpr_workgroup_id_x 1")
    a.raw("  .amdhsa_float_denorm_mode_32 3")
    a.raw(".end_amdhsa_kernel")
    return a.text()

if __name__ == "__main__":
    out = sys.argv[1] if len(sys.argv) > 1 else "cdna_kernels/" + NAME + ".s"
    kw = eval("dict(" + (sys.argv[2] if len(sys.argv) > 2 else "") + ")")
    open(out, "w").write(gen(**kw))
```

```python
import sys
sys.path.insert(0, "gen")
from asmlib import Asm
import numpy as np
NAME = "sequential_preLN__sliding_block_cached__glu_gated_glu__decode"
HEADER = open("cdna_kernels/" + NAME + ".s.ref").read().split("; Override launch")[0]

QP   = 0x000000
OS   = 0x080000
ZR   = 0x090000
ZS   = 7168
ACC  = ZR
SG   = ZR + 20480
SS   = 4608
PREO = 2048
FLGO = 4096
SLOW = 0x400000
HH   = 0x0A0000
STAMP = 0x100000
XN   = 0
SM   = 10752
WQL  = 16384
EXL  = 36864
ESTR = 1088
WSTR = 20 * ESTR
LDS_BYTES = EXL + 4 * WSTR
XSTR = 1312
SPIN = 1 << 16

def read_q(rd):
    return rd(np.float32, 32*8*4*128, QP).reshape(32, 8, 2, 4, 16, 4).sum(3).transpose(0, 1, 3, 2, 4).reshape(32, 8, 128)
def read_h(rd):
    return rd(np.float32, 5120, ACC).reshape(160, 8, 4).transpose(1, 0, 2).reshape(8, 640)
def read_o(rd, slow=0):
    o = rd(np.uint16, 32 * 8 * 128, OS + slow * SLOW).reshape(8, 2, 16, 2, 2, 4, 8)
    return o.transpose(5, 4, 1, 3, 0, 2, 6).reshape(8, 32, 128)

def gen(W=5, WR=6, W0=8, W0_until=12, WE=8, WE_from=116, nslot=12, ex_at=30, ex_every=8, nexD=0, nexF=0, stag=True, rpol='', latepol='nt', nlate=3, lateF=True, spec=0, dspec=False, pubmode=2, wb=False, outpol='', lp='nt', noatom=False, duty=(4, 8, 8), dsh=2, boost=1, top=0, topmask=2, swapFD=False, bpre=1, bpost=1,
        x_at=10, wq_every=2, dbg_at=24, poll_gap=11, npoll=1, qk_per=2, pv_per=3, pf_start=False, pf_tail=True, pf_at=110,
        stamps=False, dbgdump=False, verbose=False, trace=False, amp2=None, forceslow=False, pin=None):
    a = Asm()
    a.raw(HEADER.rstrip())
    a.raw(f"; @launch grid=(256,1,1) block=(256,1,1) lds={LDS_BYTES}")
    a.raw('.amdgcn_target "amdgcn-amd-amdhsa--gfx950"')
    a.raw(".text")
    a.raw(f".globl {NAME}_kernel")
    a.raw(".p2align 8")
    a.raw(f".type {NAME}_kernel,@function")
    a.raw(f"{NAME}_kernel:")
    def stamp(i):
        if stamps: a(f"s_memrealtime s[{70+2*i}:{71+2*i}]")
    uid = [0]
    def lab(p):
        uid[0] += 1
        return f"L_{p}{uid[0]}"
    cold = []
    a("s_load_dwordx4 s[8:11], s[0:1], 0")
    stamp(0)
    if pin: a("s_memrealtime s[70:71]")
    a(f"""
    s_load_dwordx4 s[12:15], s[0:1], 16
    s_load_dwordx16 s[16:31], s[0:1], 32
    s_cmp_ge_u32 s2, 256
    s_cbranch_scc1 L_end
    v_lshlrev_b32 v2, 4, v0
    s_lshl_b32 s7, s2, 20
    s_add_u32 s7, s7, 0xC0000
    s_mov_b32 s34, 0x40000
    s_mov_b32 s35, 0x20000
    s_waitcnt lgkmcnt(0)
    s_add_u32 s32, s10, s7
    s_addc_u32 s33, s11, 0
    """)
    def kreg(i): return f"v[{96+4*i}:{99+4*i}]" if i < 40 else f"a[{4*(i-40)}:{4*(i-40)+3}]"
    def vreg(i): return f"a[{96+4*i}:{99+4*i}]" if i < 40 else f"a[{4*(i-40)}:{4*(i-40)+3}]"
    bo = [False]
    def wins(n):
        w = W
        if n < W0_until: w = W0
        if WE and n >= WE_from: w = WE
        wr = w + (WR - W)
        if duty and (n < W0_until or (WE and n >= WE_from)): wr = w
        if bo[0] and wr + boost <= W0 + 1: w += boost; wr += boost
        fr = lambda v: int(v) + (1 if (v - int(v)) > 0 and (n % 2) else 0)
        return fr(w), fr(wr)
    def window(n):
        w, wr = wins(n)
        def cnt(k):
            big = [i for i, t in enumerate(a.vm) if t and (t[0] in "KVE" or t == "wq")]
            if len(big) < k: return None
            return len(a.vm) - 1 - big[-k]
        c2 = cnt(w); c1 = cnt(wr)
        l = lab("w")
        if top and w != wr and top > wr:
            c0 = cnt(top)
            if c0 is not None: a(f"s_waitcnt vmcnt({c0})")
            if c2 is not None: a.raw(f"    s_cbranch_vccnz {l}")
            if c1 is not None: a.raw(f"    s_waitcnt vmcnt({c1})")
        elif c1 is not None: a(f"s_waitcnt vmcnt({c1})")
        if w != wr and c2 is not None:
            if duty:
                a.raw(f"    s_bitcmp1_b32 s54, {(n >> dsh) & 31}")
                a.raw(f"    s_cbranch_scc1 {l}")
            else:
                a.raw(f"    s_cbranch_vccnz {l}")
            a.raw(f"    s_waitcnt vmcnt({c2})")
            a.raw(f"{l}:")
    def issue(n):
        i = n % 64
        a(f"s_mov_b32 s6, {i*4096}")
        if n < 64: a(f"buffer_load_dwordx4 {kreg(i)}, v2, s[32:35], s6 offen nt", tag=f"K{i}")
        else:      a(f"buffer_load_dwordx4 {vreg(i)}, v2, s[36:39], s6 offen nt", tag=f"V{i}")
    n0 = W0
    for n in range(n0 - 1): issue(n)
    lc = lab("lc")
    a(f"""
    v_lshrrev_b32 v52, 6, v0
    v_and_b32 v1, 63, v0
    v_readfirstlane_b32 s3, v52
    s_and_b32 s99, s2, 7
    s_mul_i32 s58, s99, {ZS}
    s_add_u32 s58, s58, {ZR}
    s_lshr_b32 s59, s2, 3
    s_or_b32 s59, s59, s3
    s_cbranch_scc1 {lc}
    v_add_u32 v52, s58, v2
    v_mov_b32 v56, 0
    v_mov_b32 v57, 0
    v_mov_b32 v58, 0
    v_mov_b32 v59, 0
    v_add_u32 v53, 4096, v52
    s_mul_i32 s59, s99, 3456
    s_add_u32 s59, s59, {HH}
    v_add_u32 v54, s59, v2
    v_mov_b32 v60, -1
    v_mov_b32 v61, -1
    v_mov_b32 v62, -1
    v_mov_b32 v63, -1
    """)
    for k in range(4): a(f"global_store_dwordx4 v52, v[56:59], s[30:31] offset:{k*1024} sc1", track=False)
    for k in range(3): a(f"global_store_dwordx4 v53, v[56:59], s[30:31] offset:{k*1024} sc1", track=False)
    for k in range(4): a(f"global_store_dwordx4 v54, v[60:63], s[30:31] offset:{k*1024} sc1", track=False)
    a(f"{lc}:")
    issue(n0 - 1)
    if stamps:
        for i in range(1, 14): a(f"s_mov_b32 s{70+2*i}, 0")
    a(f"""
    s_mul_i32 s58, s99, {SS}
    s_add_u32 s58, s58, {SG + FLGO}
    v_lshl_add_u32 v89, v1, 2, s58
    s_add_u32 s36, s12, s7
    s_addc_u32 s37, s13, 0
    s_lshr_b32 s4, s2, 5
    s_and_b32 s5, s2, 31
    v_lshrrev_b32 v52, 5, v0
    v_and_b32 v53, 31, v0
    v_mul_u32_u24 v37, 1280, v52
    v_lshl_add_u32 v37, v53, 3, v37
    v_mul_u32_u24 v91, {XSTR}, v52
    v_lshl_add_u32 v91, v53, 3, v91
    s_lshr_b32 s56, s4, 1
    s_and_b32 s57, s4, 1
    s_mul_i32 s58, s56, 160
    s_mul_i32 s59, s3, 40
    s_add_u32 s58, s58, s59
    v_lshrrev_b32 v52, 3, v1
    v_add_u32 v52, s58, v52
    v_lshlrev_b32 v52, 13, v52
    v_and_b32 v53, 7, v1
    v_lshl_add_u32 v52, v53, 4, v52
    s_lshl_b32 s58, s5, 8
    s_lshl_b32 s59, s57, 7
    s_add_u32 s58, s58, s59
    v_add_u32 v36, s58, v52
    s_mul_i32 s7, s3, 5120
    s_add_u32 s7, s7, {WQL}
    s_mov_b32 s38, 0x40000
    s_mov_b32 s39, 0x20000
    s_mov_b32 s42, 5242880
    s_mov_b32 s43, 0x20000
    s_mov_b32 s40, s14
    s_mov_b32 s41, s15
    """)
    a(f"""
    {"s_xor_b32 s58, s99, 7" if swapFD else "s_mov_b32 s58, s99"}
    s_mul_i32 s58, s58, 12
    s_lshr_b32 s57, s5, 3
    s_mul_i32 s59, s57, 3
    s_add_u32 s58, s58, s59
    s_add_u32 s58, s58, s4
    s_sub_u32 s58, s58, 5
    s_sub_u32 s59, s58, 40
    s_cmp_lt_u32 s58, 40
    s_cselect_b32 s60, 2, 1
    s_cselect_b32 s61, s58, s59
    s_cmp_ge_u32 s58, 94
    s_cselect_b32 s60, 3, s60
    s_and_b32 s58, s57, 1
    s_lshl_b32 s59, s4, 1
    s_add_u32 s59, s59, s58
    s_cmp_lt_u32 s4, 5
    s_cselect_b32 s60, 0, s60
    s_cselect_b32 s61, s59, s61
    s_cselect_b64 vcc, 0, -1
    """)
    if top: a(f"s_bitcmp1_b32 {topmask}, s60\ns_cselect_b64 vcc, -1, 0")
    if duty:
        pat = {0: 0x00, 1: 0x01, 2: 0x11, 3: 0x15, 4: 0x55, 5: 0x57, 6: 0x77, 7: 0x7f, 8: 0xff}
        P8 = [pat[d] * 0x01010101 for d in duty]
        a(f"""
        s_mov_b32 s52, {P8[2]}
        s_cmp_eq_u32 s60, 1
        s_cselect_b32 s52, {P8[1]}, s52
        s_cmp_eq_u32 s60, 0
        s_cselect_b32 s52, {P8[0]}, s52
        s_mov_b32 s53, s52
        s_lshr_b32 s59, s2, 3
        s_add_u32 s59, s59, s3
        s_and_b32 s59, s59, 7
        s_lshr_b64 s[52:53], s[52:53], s59
        s_mov_b32 s54, s52
        """)
    a(f"""
    s_lshr_b32 s55, s57, 1
    s_lshl_b32 s59, s99, 1
    s_add_u32 s55, s55, s59
    s_lshl_b32 s58, s58, 7
    s_and_b32 s59, s4, 1
    s_lshl_b32 s59, s59, 6
    s_add_u32 s58, s58, s59
    s_lshl_b32 s59, s56, 4
    s_add_u32 s58, s58, s59
    s_lshl_b32 s59, s55, 12
    s_add_u32 s58, s58, s59
    s_add_u32 s58, s58, {OS}
    v_and_b32 v52, 3, v1
    v_lshl_add_u32 v93, v52, 2, s58
    v_lshrrev_b32 v52, 2, v1
    v_lshl_add_u32 v93, v52, 8, v93
    """)
    def smask(k):
        assert k <= nslot
        m = 0
        for i in range(k): m |= 1 << ((2 * i + 1) * nslot // (2 * k))
        assert bin(m).count("1") == k
        return m
    def role_setup():
        lw, lf, lj = lab("rw"), lab("rf"), lab("rj")
        a(f"""
        s_mov_b32 s47, 0x20000
        s_mov_b64 s[48:49], 0
        s_mov_b32 s63, 0
        s_mov_b32 s64, 0
        s_mul_i32 s65, s3, {WSTR}
        s_add_u32 s65, s65, {EXL}
        s_mov_b32 s51, s65
        s_cmp_eq_u32 s60, 1
        s_cbranch_scc1 {lf}
        s_cmp_eq_u32 s60, 0
        s_cbranch_scc1 {lw}
        s_mov_b32 s44, s24
        s_mov_b32 s45, s25
        s_cmp_eq_u32 s60, 2
        s_cselect_b32 s46, 2211840, 0
        s_cselect_b32 s50, {smask(nexD)}, 0
        s_mov_b32 s62, 40960
        s_mul_i32 s58, s3, 448
        v_lshrrev_b32 v86, 1, v1
        v_add_u32 v86, s58, v86
        v_mul_u32_u24 v86, 1280, v86
        v_and_b32 v87, 1, v1
        v_lshl_add_u32 v86, v87, 4, v86
        s_lshl_b32 s58, s61, 5
        v_add_u32 v3, s58, v86
        s_branch {lj}
        {lf}:
        s_mov_b32 s44, s20
        s_mov_b32 s45, s21
        s_mov_b32 s46, 2211840
        s_xor_b64 s[48:49], s[20:21], s[22:23]
        s_mov_b32 s50, {smask(nexF)}
        s_bitcmp1_b32 s61, 0
        s_cselect_b32 s64, {4 * 110592 if stag else 0}, 0
        s_mov_b32 s62, 0
        s_mov_b32 s63, 55296
        s_mul_i32 s58, s3, 160
        v_lshrrev_b32 v86, 2, v1
        v_add_u32 v86, s58, v86
        v_mul_u32_u24 v86, 3456, v86
        v_lshrrev_b32 v87, 4, v1
        v_and_b32 v87, 2, v87
        v_xor_b32 v87, v87, v1
        v_and_b32 v87, 3, v87
        v_lshl_add_u32 v86, v87, 4, v86
        s_lshl_b32 s58, s61, 6
        v_add_u32 v3, s58, v86
        s_branch {lj}
        {lw}:
        s_mov_b32 s44, s16
        s_mov_b32 s45, s17
        s_mov_b32 s46, 5242880
        s_mov_b32 s50, {smask(8 - nlate)}
        s_mov_b32 s62, 10240
        s_and_b32 s58, s5, 0x17
        s_lshr_b32 s59, s3, 1
        s_lshl_b32 s59, s59, 3
        s_add_u32 s58, s58, s59
        s_lshl_b32 s58, s58, 7
        s_and_b32 s59, s3, 1
        s_lshl_b32 s59, s59, 6
        s_add_u32 s58, s58, s59
        v_lshrrev_b32 v87, 3, v1
        v_add_u32 v86, s58, v87
        v_mul_u32_u24 v86, 1280, v86
        v_and_b32 v87, 2, v87
        v_xor_b32 v87, v87, v1
        v_and_b32 v87, 7, v87
        v_lshl_add_u32 v86, v87, 4, v86
        s_lshl_b32 s58, s61, 7
        v_add_u32 v3, s58, v86
        {lj}:
        """)
    def exdma(e, track=True, pol='nt'):
        a("s_mov_b32 m0, s51")
        a(f"s_addk_i32 s51, {ESTR}")
        a(f"buffer_load_dwordx4 v3, s[44:47], s64 offen {pol} lds", tag=f"E{e}", track=track)
        a("s_add_u32 s64, s64, s62\ns_xor_b32 s62, s62, s63\ns_xor_b64 s[44:45], s[44:45], s[48:49]")
    def exslot(k):
        l = lab("xs")
        a(f"s_bitcmp1_b32 s50, {k}\ns_cbranch_scc0 {l}")
        h = list(a.hist)
        exdma(0, track=False)
        a.hist = h
        a(f"{l}:")
    def masks():
        a("""
        v_and_b32 v86, 1, v1
        v_mov_b32 v87, 0xffff
        v_lshlrev_b32 v86, 4, v86
        v_lshlrev_b32 v86, v86, v87
        v_bfe_u32 v87, v1, 1, 2
        """)
        for r in range(4):
            a(f"v_cmp_eq_u32 s[58:59], {r}, v87")
            a(f"v_cndmask_b32 v{4+r}, 0, v86, s[58:59]")
    def leader_flag():
        l = lab("lf")
        a(f"""
        s_getreg_b32 s98, hwreg(HW_REG_XCC_ID, 0, 4)
        s_add_u32 s98, s98, 1
        s_lshr_b32 s59, s2, 3
        s_or_b32 s59, s59, s3
        s_cbranch_scc1 {l}
        s_lshl_b32 s58, s99, 5
        v_mov_b32 v86, s58
        v_mov_b32 v87, s98
        s_mov_b64 exec, 1
        """)
        a("global_store_dword v86, v87, s[28:29] sc1", track=False)
        a(f"s_mov_b64 exec, -1\n{l}:")
    def prefetch_code(l0, sh, tag):
        lpc = lab("pc")
        a(f"s_getpc_b64 s[58:59]")
        a.raw(f"{lpc}:")
        if l0:
            a(f"s_add_u32 s58, s58, {l0}-{lpc}")
            a("s_addc_u32 s59, s59, 0")
        a(f"v_lshlrev_b32 v84, {sh}, v0")
        a(f"global_load_dword v85, v84, s[58:59]", tag=tag)
    def xloads():
        for j in range(5):
            a(f"global_load_dwordx2 v[{52+2*j}:{53+2*j}], v37, s[8:9] offset:{j*256}", tag="x")
    def wqdma(e):
        a(f"s_add_u32 m0, s7, {e*1024}")
        a(f"s_mov_b32 s58, {e*65536}")
        a(f"buffer_load_dwordx4 v36, s[40:43], s58 offen nt lds", tag="wq")

    F = list(range(62, 82))
    def red32(r, t, op="v_add_f32"):
        o = [f"{op}_dpp v{r}, v{r}, v{r} row_ror:{k} row_mask:0xf bank_mask:0xf" for k in (8, 4, 2, 1)]
        o += [f"v_mov_b32 v{t}, v{r}", f"v_permlane16_swap_b32 v{r}, v{t}", f"{op} v{r}, v{r}, v{t}"]
        return o
    def red64(r, t, op):
        return red32(r, t, op) + [f"v_mov_b32 v{t}, v{r}", f"v_permlane32_swap_b32 v{r}, v{t}", f"{op} v{r}, v{r}, v{t}"]
    def rbf(r): return [f"v_cvt_pk_bf16_f32 v{r}, v{r}, v{r}", f"v_lshlrev_b32 v{r}, 16, v{r}"]
    def ln1_a():
        a.vmwait("x")
        for j in range(5):
            for t in range(2):
                a(f"v_lshlrev_b32 v{F[4*j+2*t]}, 16, v{52+2*j+t}")
                a(f"v_and_b32 v{F[4*j+2*t+1]}, 0xffff0000, v{52+2*j+t}")
    def ln1_a2():
        a(f"v_pk_add_f32 v[82:83], v[{F[0]}:{F[1]}], v[{F[2]}:{F[3]}]")
        for k in range(2, 10): a(f"v_pk_add_f32 v[82:83], v[82:83], v[{F[2*k]}:{F[2*k+1]}]")
        a("v_add_f32 v82, v82, v83")
        a("\n".join(red32(82, 83)))
        a("v_mul_f32 v82, 0x3acccccd, v82")
    def ln1_b():
        a("v_mov_b32 v84, 0\nv_mov_b32 v85, 0\nv_mov_b32 v83, v82")
        for k in range(10):
            a(f"v_pk_add_f32 v[86:87], v[{F[2*k]}:{F[2*k+1]}], v[82:83] neg_lo:[0,1] neg_hi:[0,1]")
            a(f"v_pk_fma_f32 v[84:85], v[86:87], v[86:87], v[84:85]")
    def ln1_b2():
        a("v_add_f32 v84, v84, v85")
        a("\n".join(red32(84, 85)))
        a("v_mul_f32 v84, 0x3acccccd, v84")
        a("\n".join(rbf(84)))
        a("v_add_f32 v84, 0x3727c5ac, v84")
        a("\n".join(rbf(84)))
        a("v_sqrt_f32 v84, v84")
        a("\n".join(rbf(84)))
        a("v_rcp_f32 v84, v84")
        a("\n".join(rbf(82)))
        a("v_mov_b32 v83, v82\nv_mov_b32 v85, v84")
    def ln1_c(js):
        def f():
            for j in js:
                for t in range(2):
                    k = 2 * j + t
                    x0, x1 = F[2*k], F[2*k+1]
                    a(f"v_pk_add_f32 v[{x0}:{x1}], v[{x0}:{x1}], v[82:83] neg_lo:[0,1] neg_hi:[0,1]")
                    a(f"v_cvt_pk_bf16_f32 v86, v{x0}, v{x1}")
                    a(f"v_lshlrev_b32 v{x0}, 16, v86")
                    a(f"v_and_b32 v{x1}, 0xffff0000, v86")
                    a(f"v_pk_mul_f32 v[{x0}:{x1}], v[{x0}:{x1}], v[84:85]")
                    a(f"v_cvt_pk_bf16_f32 v{52+k}, v{x0}, v{x1}")
                a(f"ds_write_b64 v91, v[{52+2*j}:{53+2*j}] offset:{XN + j*256}")
        return f
    def dbg_load():
        a("v_and_b32 v88, 7, v1\nv_lshlrev_b32 v88, 5, v88")
        a("global_load_dword v90, v88, s[28:29] sc1", tag="dbg")
    def dbg_chk():
        a.vmwait("dbg")
        l0, l1 = lab("dl"), lab("dd")
        a(f"""
        v_cmp_eq_u32 s[58:59], 0, v90
        s_cmp_lg_u32 s58, 0
        s_cbranch_scc1 {l0}
        {l1}:
        v_readlane_b32 s58, v90, s99
        s_cmp_lg_u32 s58, s98
        s_cselect_b32 s98, 1, {1 if forceslow else 0}
        """)
        l2 = lab("dx")
        cold.append(f"""
        {l0}:
        s_mov_b32 s57, 0
        {l2}:
        s_sleep 4
        global_load_dword v90, v88, s[28:29] sc1
        s_add_u32 s57, s57, 1
        s_waitcnt vmcnt(0)
        v_cmp_eq_u32 s[58:59], 0, v90
        s_cmp_gt_u32 s57, {SPIN}
        s_cbranch_scc1 {l1}
        s_cmp_lg_u32 s58, 0
        s_cbranch_scc1 {l2}
        s_branch {l1}
        """)
    def qgemm_0():
        a(f"""
        v_lshrrev_b32 v54, 4, v1
        v_bfe_u32 v55, v1, 2, 2
        v_lshl_add_u32 v55, v54, 3, v55
        v_lshlrev_b32 v52, 7, v55
        v_and_b32 v55, 3, v1
        v_lshl_add_u32 v52, v55, 3, v52
        s_lshl_b32 s58, s3, 5
        s_add_u32 s58, s58, {WQL}
        v_add_u32 v52, s58, v52
        v_and_b32 v55, 7, v1
        v_mul_u32_u24 v53, {XSTR}, v55
        v_lshl_add_u32 v53, v54, 4, v53
        s_mul_i32 s58, s56, 320
        v_add_u32 v53, s58, v53
        v_lshlrev_b32 v55, 11, v55
        v_and_b32 v86, 1, v54
        v_lshl_add_u32 v55, v86, 10, v55
        v_lshrrev_b32 v54, 1, v54
        v_lshl_add_u32 v54, v54, 4, v55
        s_lshl_b32 s58, s5, 14
        s_lshl_b32 s59, s4, 7
        s_add_u32 s58, s58, s59
        s_lshl_b32 s59, s3, 5
        s_add_u32 s58, s58, s59
        s_add_u32 s58, s58, {QP}
        v_add_u32 v54, s58, v54
        """)
    def qgemm_a():
        a.vmwait("wq", "lgkmcnt(0)")
        a("s_barrier")
        for s in range(5):
            a(f"ds_read_b64_tr_b16 v[{12+4*s}:{13+4*s}], v52 offset:{s*4096}")
            a(f"ds_read_b64_tr_b16 v[{14+4*s}:{15+4*s}], v52 offset:{s*4096+512}")
            a(f"ds_read_b128 v[{32+4*s}:{35+4*s}], v53 offset:{XN + s*64}")
    def qgemm_b():
        a("s_waitcnt lgkmcnt(0)")
        for s in range(5):
            c = "0" if s == 0 else "v[56:59]"
            a(f"v_mfma_f32_16x16x32_bf16 v[56:59], v[{12+4*s}:{15+4*s}], v[{32+4*s}:{35+4*s}], {c}")
        a(f"""
        s_mul_i32 s58, s99, {SS}
        s_lshr_b32 s59, s2, 3
        s_lshl_b32 s59, s59, 2
        s_add_u32 s58, s58, s59
        s_add_u32 s58, s58, s3
        s_add_u32 s58, s58, {SG + FLGO}
        v_mov_b32 v55, s58
        v_mov_b32 v60, -1
        v_mov_b32 v61, 1
        """)
    def qstores(pol, track):
        o = f"""
        s_lshl_b32 s58, s3, 4
        s_lshl_b64 exec, 0xffff, s58
        global_store_dword v93, v60, s[30:31] {pol}
        s_mov_b32 exec_lo, 0x00ff00ff
        s_mov_b32 exec_hi, 0x00ff00ff
        global_store_dwordx4 v54, v[56:59], s[30:31] {pol}
        s_mov_b64 exec, -1
        """
        return o
    def republish():
        return f"""
        s_mov_b32 s98, {SLOW}
        v_add_u32 v93, s98, v93
        v_add_u32 v54, s98, v54
        """ + qstores("sc1", False) + """
        s_waitcnt vmcnt(0)
        s_mov_b64 exec, 1
        global_store_byte v55, v61, s[30:31] offset:128 sc1
        s_mov_b64 exec, -1
        """
    def qstore():
        a(qstores("", True), tag="qst")
    def qflag():
        a.vmwait("qst")
        l0, l1 = lab("fs"), lab("fj")
        a(f"s_cmp_lg_u32 s98, 0\ns_cbranch_scc1 {l0}\ns_mov_b64 exec, 1")
        a("global_store_byte v55, v61, s[30:31]", tag="flag")
        a(f"s_mov_b64 exec, -1\n{l1}:")
        cold.append(f"{l0}:\n" + republish() + f"s_branch {l1}")
        stamp(1)
    def qpoll_a():
        a(f"global_load_dword v53, v89, s[30:31] {lp}", tag="poll")
    def qpoll_b():
        a.vmwait("poll")
        l0, l1, l2, l3, l4 = lab("pl"), lab("pd"), lab("pl"), lab("pl"), lab("pl")
        a(f"""
        s_mov_b32 s66, 0x01010101
        v_cmp_ne_u32 s[58:59], s66, v53
        s_or_b32 s58, s58, s98
        s_cbranch_scc1 {l0}
        {l1}:
        """)
        cold.append(f"""
        {l0}:
        s_mov_b32 s57, 0
        {l2}:
        v_cmp_ne_u32 s[58:59], s66, v53
        v_cmp_ne_u32 s[68:69], 0, v53
        s_cmp_lg_u32 s98, 0
        s_cbranch_scc1 {l3}
        s_cmp_eq_u32 s58, 0
        s_cbranch_scc1 {l1}
        s_cmp_eq_u32 s69, 0
        s_cbranch_scc1 {l4}
        """ + republish() + f"""
        s_branch {l4}
        {l3}:
        s_cmp_eq_u32 s59, 0
        s_cbranch_scc1 {l1}
        {l4}:
        s_add_u32 s57, s57, 1
        s_cmp_gt_u32 s57, {SPIN}
        s_cbranch_scc1 {l1}
        s_sleep 2
        global_load_dword v53, v89, s[30:31] {lp}
        s_waitcnt vmcnt(0)
        s_branch {l2}
        """)
        stamp(2)
        a(f"""
        v_lshlrev_b32 v52, 4, v1
        s_lshl_b32 s58, s5, 14
        s_lshl_b32 s59, s4, 11
        s_add_u32 s58, s58, s59
        s_add_u32 s58, s58, s98
        s_add_u32 s58, s58, {QP}
        v_add_u32 v52, s58, v52
        """)
        a(f"global_load_dwordx4 v[56:59], v52, s[30:31] {lp}", tag="qg")
        a(f"global_load_dwordx4 v[60:63], v52, s[30:31] offset:1024 {lp}", tag="qg")
    def qfin0(sw):
        a.vmwait("qg")
        for r in range(8): a(f"v_mov_b32 v{64+r}, v{56+r}")
        for r in range(8): a(f"{sw} v{56+r}, v{64+r}")
        for r in range(8): a(f"v_add_f32 v{56+r}, v{56+r}, v{64+r}")
    def qfin():
        qfin0("v_permlane16_swap_b32")
        for r in range(4): a(f"v_cvt_pk_bf16_f32 v{8+r}, v{56+2*r}, v{57+2*r}")
        a("s_mov_b32 s66, 0xaaaaaaaa\ns_mov_b32 s67, 0xaaaaaaaa\ns_mov_b32 s68, 0xcccccccc\ns_mov_b32 s69, 0xcccccccc")
    P = list(range(36, 52))
    def qk(i0, cnt):
        def f():
            a.vmwait(f"K{i0+cnt-1}")
            srcs = []
            for i in range(i0, i0 + cnt):
                t = i % 16
                if i < 40: src = [96 + 4*i + r for r in range(4)]
                else:
                    base = 28 + 4 * (i % 2)
                    src = [base + r for r in range(4)]
                    for r in range(4): a(f"v_accvgpr_read_b32 v{base+r}, a{4*(i-40)+r}")
                srcs.append((t, src))
                a(f"v_mov_b32 v{P[t]}, 0")
                if len(srcs) == 2:
                    for r in range(4):
                        for (t2, s2) in srcs: a(f"v_dot2c_f32_bf16 v{P[t2]}, v{s2[r]}, v{8+r}")
                    srcs.clear()
        return f
    def qkred(m):
        def f():
            for t in range(8): a(f"v_add_f32_dpp v{P[t]}, v{P[t]}, v{P[t]} row_ror:8 row_mask:0xf bank_mask:0x3")
            for t in range(8): a(f"v_add_f32_dpp v{P[t]}, v{P[t+8]}, v{P[t+8]} row_ror:8 row_mask:0xf bank_mask:0xc")
            for t in range(4): a(f"v_add_f32_dpp v{P[t]}, v{P[t]}, v{P[t]} row_ror:12 row_mask:0xf bank_mask:0x5")
            for t in range(4): a(f"v_add_f32_dpp v{P[t]}, v{P[t+4]}, v{P[t+4]} row_ror:4 row_mask:0xf bank_mask:0xa")
            for t in range(4): a(f"v_add_f32_dpp v{P[t]}, v{P[t]}, v{P[t]} quad_perm:[1,0,3,2] row_mask:0xf bank_mask:0xf")
            for t in range(4): a(f"v_add_f32_dpp v{P[t]}, v{P[t]}, v{P[t]} quad_perm:[2,3,0,1] row_mask:0xf bank_mask:0xf")
            a(f"v_cndmask_b32 v{P[0]}, v{P[0]}, v{P[1]}, s[66:67]")
            a(f"v_cndmask_b32 v{P[2]}, v{P[2]}, v{P[3]}, s[66:67]")
            a(f"v_cndmask_b32 v{12+m}, v{P[0]}, v{P[2]}, s[68:69]")
        return f
    def softmax_a():
        a("v_cvt_pk_bf16_f32 v52, v12, v13\nv_cvt_pk_bf16_f32 v53, v14, v15")
        a("v_lshlrev_b32 v12, 16, v52\nv_and_b32 v13, 0xffff0000, v52\nv_lshlrev_b32 v14, 16, v53\nv_and_b32 v15, 0xffff0000, v53")
        for m in range(4): a(f"v_mul_f32 v{12+m}, 0x3db504f3, v{12+m}")
        a("v_cvt_pk_bf16_f32 v52, v12, v13\nv_cvt_pk_bf16_f32 v53, v14, v15")
        a("v_lshlrev_b32 v12, 16, v52\nv_and_b32 v13, 0xffff0000, v52\nv_lshlrev_b32 v14, 16, v53\nv_and_b32 v15, 0xffff0000, v53")
        if dbgdump:
            a(f"s_lshl_b32 s58, s2, 12\ns_lshl_b32 s59, s3, 10\ns_add_u32 s58, s58, s59\ns_add_u32 s58, s58, 0x200000\nv_lshl_add_u32 v54, v1, 2, s58")
            for m in range(4): a(f"global_store_dword v54, v{12+m}, s[30:31] offset:{m*256}", track=False)
        a("v_max_f32 v52, v12, v13\nv_max3_f32 v52, v52, v14, v15")
        a("\n".join(red64(52, 53, "v_max_f32")))
    def softmax_a2():
        for m in range(4): a(f"v_sub_f32 v{12+m}, v{12+m}, v52")
        for m in range(4): a(f"v_mul_f32 v{12+m}, 0x3fb8aa3b, v{12+m}")
        for m in range(4): a(f"v_exp_f32 v{12+m}, v{12+m}")
        a("v_add_f32 v53, v12, v13\nv_add_f32 v54, v14, v15\nv_add_f32 v53, v53, v54")
        a("\n".join(red64(53, 54, "v_add_f32")))
        a(f"s_lshl_b32 s58, s3, 3\nv_mov_b32 v54, s58\nds_write_b64 v54, v[52:53] offset:{SM}")
    def softmax_b0():
        a("s_waitcnt lgkmcnt(0)\ns_barrier\nv_mov_b32 v54, 0")
        a(f"ds_read_b128 v[56:59], v54 offset:{SM}\nds_read_b128 v[60:63], v54 offset:{SM+16}")
    def softmax_b():
        a("s_waitcnt lgkmcnt(0)")
        a("v_max_f32 v54, v56, v58\nv_max3_f32 v54, v54, v60, v62")
        for r in (56, 58, 60, 62, 52): a(f"v_sub_f32 v{r}, v{r}, v54")
        for r in (56, 58, 60, 62, 52): a(f"v_mul_f32 v{r}, 0x3fb8aa3b, v{r}")
        for r in (56, 58, 60, 62, 52): a(f"v_exp_f32 v{r}, v{r}")
        a("v_mul_f32 v54, v56, v57\nv_fmac_f32 v54, v58, v59\nv_fmac_f32 v54, v60, v61\nv_fmac_f32 v54, v62, v63")
        a("v_rcp_f32 v54, v54\nv_mul_f32 v52, v52, v54")
        for m in range(4): a(f"v_mul_f32 v{12+m}, v{12+m}, v52")
        for m in range(4): a(f"v_cvt_pk_bf16_f32 v{12+m}, v{12+m}, v{12+m}")
        build(0)
        stamp(3)
    def build(i):
        b = 20 + 4 * (i % 2)
        for r in range(4):
            a(f"v_and_b32_dpp v{b+r}, v{12 + i//16}, v{4+r} row_newbcast:{i%16} row_mask:0xf bank_mask:0xf")
    def pv(i):
        if i + 1 < 64: build(i + 1)
        a.vmwait(f"V{i}")
        b = 20 + 4 * (i % 2)
        c = "0" if i == 0 else "v[16:19]"
        a(f"v_mfma_f32_16x16x32_bf16 v[16:19], v[{b}:{b+3}], {vreg(i)}, {c}")
    def tail_pre_a():
        a(f"""
        v_and_b32 v52, 15, v1
        v_lshrrev_b32 v53, 4, v1
        v_and_b32 v56, 1, v53
        v_lshlrev_b32 v54, 5, v52
        v_lshl_add_u32 v54, v56, 4, v54
        s_lshl_b32 s58, s3, 9
        v_add_u32 v54, s58, v54
        v_lshlrev_b32 v55, 3, v1
        v_add_u32 v55, {SM + 64}, v55
        v_bfe_u32 v57, v1, 3, 1
        s_lshl_b32 s58, s55, 12
        s_add_u32 s58, s58, s98
        s_add_u32 s58, s58, {OS}
        v_lshl_add_u32 v36, v1, 4, s58
        v_mul_u32_u24 v37, {ESTR}, v53
        v_bfe_u32 v58, v1, 2, 2
        v_lshl_add_u32 v37, v58, 7, v37
        v_and_b32 v58, 3, v1
        v_lshl_add_u32 v37, v58, 3, v37
        v_xor_b32 v57, s3, v57
        v_lshl_add_u32 v37, v57, 5, v37
        v_add_u32 v37, {EXL}, v37
        v_add_u32 v38, {2*WSTR}, v37
        """)
    def tail_pre_b():
        l = lab("ci")
        a(f"""
        v_lshrrev_b32 v57, 5, v1
        s_lshl_b32 s58, s61, 6
        s_lshl_b32 s59, s3, 4
        s_add_u32 s58, s58, s59
        v_add_u32 v58, s58, v52
        s_lshl_b32 s58, s58, 5
        s_add_u32 s58, s58, {ACC}
        v_lshl_add_u32 v39, v52, 2, s58
        v_lshl_add_u32 v39, v57, 6, v39
        v_lshl_add_u32 v39, v56, 8, v39
        s_mul_i32 s58, s55, 10
        s_add_u32 s58, s58, s61
        s_and_b32 s58, s58, 15
        s_lshl_b32 s58, s58, 7
        s_add_u32 s58, s58, {SG}
        v_mul_u32_u24 v40, {SS}, v1
        v_add_u32 v40, s58, v40
        v_mov_b32 v41, 1
        s_add_u32 s59, s58, {PREO}
        s_lshr_b32 s58, s2, 3
        s_and_b32 s58, s58, 15
        s_lshl_b32 s58, s58, 7
        s_add_u32 s58, s58, {SG + PREO}
        {"s_mov_b32 s58, s59" if spec == 2 else ""}
        s_add_u32 s40, s30, s58
        s_addc_u32 s41, s31, 0
        v_mov_b32 v44, 0
        v_mov_b32 v45, 0
        v_mov_b32 v46, 0
        v_mov_b32 v47, 0
        s_or_b32 s58, s55, s60
        s_cbranch_scc1 {l}
        v_mul_u32_u24 v57, 1280, v56
        v_lshl_add_u32 v57, v58, 1, v57
        v_add_u32 v57, 3840, v57
        """)
        for r in range(4): a(f"global_load_short_d16_hi v{44+r}, v57, s[8:9] offset:{r*2560-3840}", track=False)
        a(f"{l}:")

    xa = max(x_at, n0)
    wqs = [xa + 1 + wq_every * e for e in range(5)]
    Q = []
    if pf_start: Q.append((0, None, lambda: prefetch_code(None, 6, "pf")))
    Q += [(0, None, role_setup), (0, None, masks)]
    Q += [(xa, None, xloads), (0, f"K{n0-1}", leader_flag), (0, "x", ln1_a)]
    Q += [(0, None, f) for f in (ln1_a2, ln1_b, ln1_b2)]
    Q += [(0, None, ln1_c([0])), (0, None, ln1_c([1, 2])), (0, None, ln1_c([3, 4])), (0, None, qgemm_0)]
    Q += [(wqs[-1] + max(WR, top) + 1, None, qgemm_a), (0, None, qgemm_b), (dbg_at, None, lambda: (qstore(), dbg_load())), (0, "dbg", lambda: (dbg_chk(), qflag()))]
    Q += [(-poll_gap, None, qpoll_a), (0, "poll", qpoll_b), (0, "qg", lambda: qfin0("v_permlane32_swap_b32")), (0, None, qfin)]
    kdone = [0]
    def mkqk(i):
        f = qk(i, qk_per)
        def g():
            f(); kdone[0] = i + qk_per
        return g
    for i in range(0, 64, qk_per):
        Q.append((i + qk_per, f"K{i+qk_per-1}", mkqk(i)))
        if (i + qk_per) % 16 == 0: Q.append((0, None, qkred((i + qk_per) // 16 - 1)))
    smb = [999]
    def smb_f():
        softmax_b(); smb[0] = cur[0]
    Q += [(0, None, softmax_a), (0, None, softmax_a2), (0, None, softmax_b0), (0, None, smb_f)]
    if pf_tail: Q.append((pf_at, None, lambda: prefetch_code("L_tail", 5, "pf")))
    Q += [(116, None, tail_pre_a), (0, None, tail_pre_b)]
    pvdone = [0]; exi = 0; cur = [0]; log = []; lastq = 0
    for n in range(n0, 128):
        cur[0] = n
        names = [getattr(q[2], "__name__", "") for q in Q[:bpre + 1]]
        near = "softmax_b0" in names or (names and names[0] == "qgemm_a" and n >= wqs[-1] + WR - bpre)
        if log and any(nm in ("softmax_b0", "qgemm_a") and n - st <= bpost for st, nm in log): near = True
        bo[0] = bool(boost and near)
        window(n)
        if trace:
            if n > n0:
                a("s_waitcnt lgkmcnt(0)")
                a(f"v_writelane_b32 v{94 + (n-1)//64}, s100, {(n-1)%64}")
            a("s_memrealtime s[100:101]")
        assert n < 104 or kdone[0] > n - 64
        issue(n)
        if n in wqs:
            window(n); wqdma(wqs.index(n))
        if n >= ex_at and (n - ex_at) % ex_every == 0 and exi < nslot and n < 127:
            exslot(exi); exi += 1
        if Q:
            mn, tg, f = Q[0]
            if mn < 0: mn = lastq - mn
            if mn <= n and (tg is None or tg not in a.vm):
                Q.pop(0); f(); lastq = n; log.append((n, getattr(f, "__name__", "?")))
        if n > smb[0]:
            c = 0
            while pvdone[0] <= n - 64 and f"V{pvdone[0]}" not in a.vm and c < pv_per:
                pv(pvdone[0]); pvdone[0] += 1; c += 1
    assert not Q, Q
    if verbose: print(log, "pv backlog", 64 - pvdone[0])
    assert exi == nslot
    if trace:
        a(f"""
        s_lshl_b32 s58, s2, 11
        s_lshl_b32 s59, s3, 9
        s_add_u32 s58, s58, s59
        s_add_u32 s58, s58, 0x300000
        v_lshl_add_u32 v57, v1, 2, s58
        """)
        a("global_store_dword v57, v94, s[30:31]", track=False)
        a("global_store_dword v57, v95, s[30:31] offset:256", track=False)
    a.raw("L_tail:")
    if nlate:
        a(f"s_cmp_ge_u32 s60, {2 if lateF else 1}\ns_cselect_b32 s46, 0, s46")
    for k in range(nlate):
        window(127); exdma(100 + k, pol=latepol)
        while pvdone[0] < 64 and f"V{pvdone[0]}" not in a.vm:
            pv(pvdone[0]); pvdone[0] += 1
    while pvdone[0] < 64:
        pv(pvdone[0]); pvdone[0] += 1
    stamp(4)
    OP = SM + 64
    RP = WQL
    a(f"ds_write_b128 v54, v[16:19] offset:{OP}")
    a("s_waitcnt lgkmcnt(0)\ns_barrier")
    ls, lq = lab("pubs"), lab("pubq")
    if pubmode: a(f"s_cmp_lg_u32 s3, 0\ns_cbranch_scc1 {lq}")
    a(f"ds_read2st64_b64 v[56:59], v55 offset0:0 offset1:1\nds_read2st64_b64 v[60:63], v55 offset0:2 offset1:3")
    a(f"""
    s_waitcnt lgkmcnt(0)
    v_pk_add_f32 v[56:57], v[56:57], v[58:59]
    v_pk_add_f32 v[60:61], v[60:61], v[62:63]
    v_pk_add_f32 v[56:57], v[56:57], v[60:61]
    v_cvt_pk_bf16_f32 v56, v56, v57
    v_min_u32 v56, -2, v56
    s_cmp_lg_u32 s98, 0
    s_cbranch_scc1 {ls}
    """)
    a("global_store_dword v93, v56, s[30:31]", track=False)
    cold.append(f"{ls}:\nglobal_store_dword v93, v56, s[30:31] sc1\ns_branch {lq}")
    a(f"{lq}:")
    if pubmode == 2: a("s_barrier")
    def presig():
        lr = lab("pubr")
        a(f"s_cmp_lg_u32 s3, 1\ns_cbranch_scc1 {lr}")
        for r in range(3, 8): a(f"s_atomic_add s3, s[40:41], {r * SS}")
        a(f"{lr}:")
    if spec == 1: presig()
    stamp(5)
    a("s_cmp_lg_u32 s60, 0\ns_cbranch_scc1 L_role")
    assert nlate <= 4
    def wtr(s):
        r = 96 + 4*s
        off = ((s >> 1) & 1) * WSTR + (s & 1) * 4 * ESTR
        a(f"ds_read_b64_tr_b16 v[{r}:{r+1}], v{37 + (s >> 2)} offset:{off}")
        a(f"ds_read_b64_tr_b16 v[{r+2}:{r+3}], v{37 + (s >> 2)} offset:{off + 512}")
    l0, l1, l2 = lab("wp"), lab("wd"), lab("we")
    for s in range(4): a(f"global_load_dwordx4 v[{64+4*s}:{67+4*s}], v36, s[30:31] offset:{s*1024} {lp}")
    for s in (0, 2, 4, 6): wtr(s)
    a(f"s_mov_b32 s66, 0\ns_mov_b32 s68, 0\ns_mov_b32 s69, -1")
    if nlate: a(f"s_waitcnt vmcnt({4 if pubmode else 5})\ns_barrier")
    for s in (1, 3, 5, 7): wtr(s)
    a(f"s_branch {l2}")
    a(f"{l0}:")
    for s in range(4): a(f"global_load_dwordx4 v[{64+4*s}:{67+4*s}], v36, s[30:31] offset:{s*1024} {lp}")
    a(f"{l2}:")
    a(f"s_add_u32 s66, s66, 1\ns_cmp_gt_u32 s66, {SPIN}\ns_cbranch_scc1 {l1}")
    for s in range(4):
        a(f"s_waitcnt vmcnt({3-s})")
        if s == 0: a("v_max3_u32 v56, v64, v65, v66\nv_max_u32 v56, v56, v67")
        else: a(f"v_max3_u32 v56, v56, v{64+4*s}, v{65+4*s}\nv_max3_u32 v56, v56, v{66+4*s}, v{67+4*s}")
    a(f"v_cmp_eq_u32 vcc, -1, v56\ns_cbranch_vccnz {l0}\n{l1}:\ns_waitcnt vmcnt(0) lgkmcnt(0)")
    stamp(6)
    if spec == 2: presig()
    for s in range(4):
        a(f"v_mfma_f32_16x16x32_bf16 v[44:47], v[{64+4*s}:{67+4*s}], v[{96+4*s}:{99+4*s}], v[44:47]")
        c = "0" if s == 0 else "v[48:51]"
        a(f"v_mfma_f32_16x16x32_bf16 v[48:51], v[{64+4*s}:{67+4*s}], v[{112+4*s}:{115+4*s}], {c}")
    a("""
    v_permlane32_swap_b32 v48, v46
    v_permlane32_swap_b32 v49, v47
    v_cndmask_b32 v44, v44, v50, s[68:69]
    v_cndmask_b32 v45, v45, v51, s[68:69]
    v_cndmask_b32 v46, v46, v48, s[68:69]
    v_cndmask_b32 v47, v47, v49, s[68:69]
    v_add_f32 v45, v45, v47
    v_add_f32 v48, v44, v46
    v_add_f32 v44, v44, v46
    v_mov_b32_dpp v44, v45 row_ror:8 row_mask:0xf bank_mask:0xc
    v_mov_b32_dpp v45, v48 row_ror:8 row_mask:0xf bank_mask:0x3
    v_permlane16_swap_b32 v44, v45
    v_mov_b32 v48, v44
    v_mov_b32_dpp v44, v45 row_ror:4 row_mask:0xf bank_mask:0xa
    v_mov_b32_dpp v45, v48 row_ror:12 row_mask:0xf bank_mask:0x5
    """)
    if noatom: a("s_branch L_out")
    a(f"global_atomic_add_f32 v39, v44, s[30:31]")
    a(f"global_atomic_add_f32 v39, v45, s[30:31] offset:128")
    a("s_waitcnt vmcnt(0)\ns_barrier")
    stamp(7)
    a("s_cmp_lg_u32 s3, 0\ns_cbranch_scc1 L_out\ns_mov_b64 exec, 0xff")
    a("global_atomic_add v40, v41, s[30:31]")
    a("s_mov_b64 exec, -1")
    if wb:
        a("s_and_b32 s58, s55, 1\ns_or_b32 s58, s58, s61\ns_cbranch_scc1 L_out\nbuffer_wbl2 sc1")
    a("s_branch L_out")

    def sigpoll(off=0, full=10, wave=0):
        l0, l1 = lab("sp"), lab("sd")
        a(f"""
        s_mul_i32 s58, s99, {SS}
        s_add_u32 s58, s58, {SG + off}
        v_lshl_add_u32 v88, v52, 7, s58
        s_mov_b32 s66, 0
        s_cmp_lg_u32 s3, {wave}
        s_cbranch_scc1 {l1}
        s_mov_b64 exec, 0xffff
        """)
        R = [89, 87, 86][:npoll]
        for r in R[:-1]: a(f"global_load_dword v{r}, v88, s[30:31] sc1\ns_sleep 1")
        a(f"{l0}:\ns_add_u32 s66, s66, 1\ns_cmp_gt_u32 s66, {40 if noatom else SPIN}\ns_cbranch_scc1 {l1}")
        for k in range(npoll):
            a(f"global_load_dword v{R[k-1]}, v88, s[30:31] sc1")
            if npoll > 1: a("s_sleep 1")
            a(f"s_waitcnt vmcnt({npoll-1})")
            a(f"v_cmp_gt_u32 vcc, {full}, v{R[k]}")
            a(f"s_cbranch_vccz {l1}" if k < npoll - 1 else f"s_cbranch_vccnz {l0}")
        a(f"""
        {l1}:
        s_mov_b64 exec, -1
        s_barrier
        """)
        a.vm = []
    a.vm = []
    a("L_role:\ns_cmp_eq_u32 s60, 3\ns_cbranch_scc1 L_out\n" + ("s_barrier\n" if pubmode == 1 else "") + "s_cmp_eq_u32 s60, 2\ns_cbranch_scc1 L_D")
    eF = nexF + (nlate if lateF else 0)
    if lateF:
        a.vm = [f"E{e}" for e in range(nexF, eF)]
    else:
        a(f"s_mov_b32 s46, 2211840\ns_mov_b32 s64, {(eF // 2) * 55296}\ns_add_u32 s51, s65, {eF * ESTR}\ns_mov_b32 s62, {(eF % 2) * 55296}")
        a(f"s_mov_b64 s[44:45], s[{20 + 2 * (eF % 2)}:{21 + 2 * (eF % 2)}]")
    assert not stag or (eF <= 4 and lateF) or eF == 0
    if stag and not lateF: a(f"s_bitcmp1_b32 s61, 0\ns_cselect_b32 s64, {4 * 110592}, 0")
    if stag: a(f"s_bitcmp1_b32 s61, 0\ns_cselect_b32 s42, {-2 * 110592}, 0\ns_cselect_b32 s43, -1, 1\ns_lshl_b32 s43, s43, 10")
    for e in range(eF, 20):
        if stag and e % 4 == 0 and e > 0: a("s_add_u32 s64, s64, s42")
        exdma(e, pol=rpol)
    a(f"""
    v_lshrrev_b32 v54, 5, v1
    v_mul_u32_u24 v55, {2*ESTR}, v54
    v_and_b32 v54, 1, v53
    v_bfe_u32 v56, v1, 2, 2
    v_lshl_add_u32 v56, v54, 3, v56
    v_lshl_add_u32 v55, v56, 6, v55
    v_and_b32 v56, 3, v1
    v_lshl_add_u32 v55, v56, 3, v55
    v_add_u32 v55, s65, v55
    v_xor_b32 v56, 1, v54
    v_lshl_add_u32 v56, v56, 5, v55
    v_lshl_add_u32 v55, v54, 5, v55
    s_mul_i32 s58, s3, 5120
    s_add_u32 s58, s58, {ACC + 2048}
    v_lshl_add_u32 v10, v1, 4, s58
    {"" if stag else "s_movk_i32 s43, 1024"}
    v_subrev_u32 v9, s43, v10
    v_subrev_u32 v8, s43, v9
    v_add_u32 v11, s43, v10
    v_add_u32 v12, s43, v11
    s_mul_i32 s58, s3, 5120
    s_add_u32 s58, s58, {RP}
    v_lshl_add_u32 v57, v1, 4, s58
    v_lshrrev_b32 v82, 5, v0
    v_bfe_u32 v83, v0, 2, 3
    v_bfe_u32 v84, v0, 1, 1
    v_and_b32 v85, 1, v0
    v_lshlrev_b32 v59, 10, v84
    v_lshl_add_u32 v59, v82, 8, v59
    v_lshl_add_u32 v59, v85, 3, v59
    v_add_u32 v59, {RP}, v59
    v_lshl_add_u32 v58, v83, 4, v59
    v_add_u32 v59, 128, v59
    v_lshrrev_b32 v60, 2, v83
    v_lshlrev_b32 v60, 8, v60
    v_lshl_add_u32 v60, v83, 4, v60
    v_and_b32 v84, 3, v83
    v_lshl_add_u32 v60, v84, 2, v60
    v_add_u32 v60, {RP + 4096}, v60
    v_lshlrev_b32 v61, 4, v83
    v_add_u32 v61, {RP + 4096 + 512}, v61
    s_lshl_b32 s58, s61, 9
    s_add_u32 s58, s58, {HH}
    v_lshl_add_u32 v90, v0, 2, s58
    """)
    for r in range(62, 82): a(f"v_mov_b32 v{r}, 0x3f803f80")
    for s in range(5):
        a.vmwait(f"E{4*s+3}")
        for mu in range(2):
            for n in range(2):
                r = 96 + ((s*2 + mu)*2 + n) * 4
                off = (4*s + mu) * ESTR
                a(f"ds_read_b64_tr_b16 v[{r}:{r+1}], v{55+n} offset:{off}")
                a(f"ds_read_b64_tr_b16 v[{r+2}:{r+3}], v{55+n} offset:{off+256}")
    a(f"v_mov_b32 v91, 0\nv_mov_b32 v93, 1\nds_write_b32 v91, v91 offset:{SM}\ns_mov_b32 s67, 0")
    stamp(6)
    if spec: sigpoll(PREO, 16 if spec == 1 else 10)
    else: sigpoll()
    stamp(7)
    a("L_spec:")
    for s in range(5): a(f"global_load_dwordx4 v[{176+4*s}:{179+4*s}], v{8+s}, s[30:31] sc1", tag=f"h{s}")
    def prep(s):
        a.vmwait(f"h{s}", "lgkmcnt(0)" if s == 0 else "")
        t = 40 + 2 * (s % 2)
        a(f"v_cvt_pk_bf16_f32 v{t}, v{176+4*s}, v{177+4*s}")
        a(f"v_cvt_pk_bf16_f32 v{t+1}, v{178+4*s}, v{179+4*s}")
    def prep2(s):
        t = 40 + 2 * (s % 2); R = 62 + 4*s
        return [f"v_mov_b32_dpp v{R}, v{t} quad_perm:[0,1,2,3] row_mask:0xf bank_mask:0x3",
                f"v_mov_b32_dpp v{R+1}, v{t+1} quad_perm:[0,1,2,3] row_mask:0xf bank_mask:0x3",
                f"v_mov_b32_dpp v{R+2}, v{t} row_ror:8 row_mask:0xf bank_mask:0x3",
                f"v_mov_b32_dpp v{R+3}, v{t+1} row_ror:8 row_mask:0xf bank_mask:0x3"]
    def fm(s, k):
        R = 62 + 4*s
        d = 20 + 4*k
        c = "0" if s == 0 else f"v[{d}:{d+3}]"
        r = 96 + (s*4 + k) * 4 if k < 4 else R
        return f"v_mfma_f32_16x16x32_bf16 v[{d}:{d+3}], v[{r}:{r+3}], v[{R}:{R+3}], {c}"
    prep(0)
    stamp(8)
    a("\n".join(prep2(0)))
    for s in range(5):
        if s < 4:
            a(fm(s, 0)); prep(s + 1); a(fm(s, 1))
            p2 = prep2(s + 1)
            a(fm(s, 2)); a(p2[0]); a(p2[1]); a(fm(s, 3)); a(p2[2]); a(p2[3]); a(fm(s, 4))
        else:
            for k in range(5): a(fm(s, k))
    for k in range(5): a(f"ds_write_b128 v57, v[{20+4*k}:{23+4*k}] offset:{k*1024}")
    a("s_waitcnt lgkmcnt(0)\ns_barrier")
    if not spec: stamp(9)
    a("s_cmp_gt_u32 s3, 1\ns_cbranch_scc1 " + ("L_fver" if spec else "L_out"))
    a("""
    ds_read2st64_b32 v[20:21], v61 offset0:0 offset1:20
    ds_read2st64_b32 v[22:23], v61 offset0:40 offset1:60
    ds_read2st64_b32 v[24:25], v60 offset0:0 offset1:20
    ds_read2st64_b32 v[26:27], v60 offset0:40 offset1:60
    ds_read2st64_b64 v[232:235], v59 offset0:0 offset1:10
    ds_read2st64_b64 v[236:239], v59 offset0:20 offset1:30
    ds_read2st64_b64 v[240:243], v58 offset0:0 offset1:10
    ds_read2st64_b64 v[244:247], v58 offset0:20 offset1:30
    ds_read2st64_b64 v[216:219], v59 offset0:4 offset1:14
    ds_read2st64_b64 v[220:223], v59 offset0:24 offset1:34
    ds_read2st64_b64 v[224:227], v58 offset0:4 offset1:14
    ds_read2st64_b64 v[228:231], v58 offset0:24 offset1:34
    v_mov_b32 v30, 0x3727c5ac
    s_waitcnt lgkmcnt(8)
    v_pk_add_f32 v[20:21], v[20:21], v[22:23]
    v_pk_add_f32 v[24:25], v[24:25], v[26:27]
    v_add_f32 v20, v20, v21
    v_add_f32 v24, v24, v25
    v_mul_f32 v20, 0x3acccccd, v20
    v_mul_f32 v24, 0x3acccccd, v24
    v_fma_f32 v24, -v20, v20, v24
    v_max_f32 v24, 0, v24
    v_add_f32 v24, v24, v30
    v_rsq_f32 v24, v24
    v_mov_b32 v21, v20
    s_waitcnt lgkmcnt(4)
    v_pk_add_f32 v[232:233], v[232:233], v[234:235]
    v_pk_add_f32 v[236:237], v[236:237], v[238:239]
    v_pk_add_f32 v[240:241], v[240:241], v[242:243]
    v_pk_add_f32 v[244:245], v[244:245], v[246:247]
    v_pk_add_f32 v[232:233], v[232:233], v[236:237]
    v_pk_add_f32 v[240:241], v[240:241], v[244:245]
    v_mul_f32 v26, 0xbfb8aa3b, v24
    v_pk_fma_f32 v[240:241], v[232:233], v[20:21], v[240:241] neg_lo:[1,0,0] neg_hi:[1,0,0]
    v_mul_f32 v240, v240, v26
    v_mul_f32 v241, v241, v26
    v_exp_f32 v240, v240
    v_exp_f32 v241, v241
    s_waitcnt lgkmcnt(0)
    v_pk_add_f32 v[216:217], v[216:217], v[218:219]
    v_pk_add_f32 v[220:221], v[220:221], v[222:223]
    v_add_f32 v240, 1.0, v240
    v_add_f32 v241, 1.0, v241
    v_rcp_f32 v240, v240
    v_rcp_f32 v241, v241
    v_pk_add_f32 v[224:225], v[224:225], v[226:227]
    v_pk_add_f32 v[228:229], v[228:229], v[230:231]
    v_pk_add_f32 v[216:217], v[216:217], v[220:221]
    v_pk_add_f32 v[224:225], v[224:225], v[228:229]
    v_mul_f32 v240, v240, v24
    v_mul_f32 v241, v241, v24
    v_pk_fma_f32 v[224:225], v[216:217], v[20:21], v[224:225] neg_lo:[1,0,0] neg_hi:[1,0,0]
    v_pk_mul_f32 v[240:241], v[240:241], v[224:225]
    v_cvt_pk_bf16_f32 v240, v240, v241
    v_min_u32 v240, -2, v240
    """)
    if spec:
        lm, lok = lab("fm"), lab("fok")
        a(f"L_fver:\ns_cmp_lg_u32 s67, 0\ns_cbranch_scc1 {lok}")
        sigpoll(0, 10, 3)
        stamp(9)
        for s in range(5): a(f"global_load_dwordx4 v[{196+4*s}:{199+4*s}], v{8+s}, s[30:31] sc1", tag=f"g{s}")
        for s in range(5):
            a.vmwait(f"g{s}")
            a(f"v_cmpx_eq_u64 vcc, v[{176+4*s}:{177+4*s}], v[{196+4*s}:{197+4*s}]")
            a(f"v_cmpx_eq_u64 vcc, v[{178+4*s}:{179+4*s}], v[{198+4*s}:{199+4*s}]")
        a(f"""
        s_cmp_eq_u64 vcc, -1
        s_mov_b64 exec, -1
        s_cbranch_scc1 {lm}
        ds_write_b32 v91, v93 offset:{SM}
        s_waitcnt lgkmcnt(0)
        {lm}:
        s_barrier
        ds_read_b32 v94, v91 offset:{SM}
        s_waitcnt lgkmcnt(0)
        v_cmp_ne_u32 vcc, 0, v94
        s_mov_b32 s67, 1
        s_cbranch_vccnz L_spec
        s_mov_b32 s67, 0
        {lok}:
        s_cmp_gt_u32 s3, 1
        s_cbranch_scc1 L_out
        """)
    a("""
    global_store_dword v90, v240, s[30:31] sc1
    """)
    stamp(10)
    a("s_branch L_out")
    a.vm = []
    a("L_D:")
    a(f"s_mov_b32 s46, 2211840\ns_mov_b32 s64, {nexD * 40960}\ns_add_u32 s51, s65, {nexD * ESTR}")
    assert not stag or nexD == 0
    a("s_and_b32 s58, s61, 3\ns_lshl_b32 s58, s58, 1\ns_min_u32 s58, s58, 5" if stag else "s_mov_b32 s58, 0")
    for e in range(14):
        if e % 2 == 0:
            a(f"s_lshl_b32 s{32 + e // 2}, s58, 10")
            if stag: a("s_mul_i32 s64, s58, 81920")
            a("s_add_u32 s58, s58, 1\ns_cmp_eq_u32 s58, 7\ns_cselect_b32 s58, 0, s58")
        if e >= nexD: exdma(e, pol=rpol)
    a(f"""
    v_lshl_add_u32 v55, v1, 3, s65
    s_add_u32 s52, s30, {HH}
    s_addc_u32 s53, s31, 0
    s_mov_b32 s54, 27648
    s_mov_b32 s55, 0x20000
    v_bfe_u32 v54, v1, 3, 1
    v_and_b32 v56, 7, v1
    v_lshlrev_b32 v57, 9, v54
    v_lshl_add_u32 v57, v53, 7, v57
    v_lshl_add_u32 v57, v56, 4, v57
    s_mul_i32 s58, s3, 7168
    v_add_u32 v57, s58, v57
    v_add_u32 v58, 4096, v57
    v_lshlrev_b32 v59, 6, v52
    v_lshl_add_u32 v59, v53, 4, v59
    s_lshl_b32 s58, s3, 10
    v_add_u32 v59, s58, v59
    v_lshlrev_b32 v60, 3, v1
    v_lshrrev_b32 v62, 3, v1
    v_mul_u32_u24 v61, 1280, v62
    v_lshl_add_u32 v61, v56, 2, v61
    s_lshl_b32 s58, s61, 5
    v_add_u32 v61, s58, v61
    s_lshl_b32 s58, s61, 9
    s_add_u32 s58, s58, {ACC}
    v_lshl_add_u32 v40, v62, 4, s58
    v_bfe_u32 v62, v1, 1, 2
    v_lshl_add_u32 v40, v62, 7, v40
    v_and_b32 v62, 1, v1
    v_lshl_add_u32 v40, v62, 3, v40
    s_mov_b32 s68, 0xff00ff00
    s_mov_b32 s69, 0xff00ff00
    """)
    for e in range(14):
        a.vmwait(f"E{e}")
        r = 96 + 4*e
        a(f"ds_read_b64_tr_b16 v[{r}:{r+1}], v55 offset:{e*ESTR}")
        a(f"ds_read_b64_tr_b16 v[{r+2}:{r+3}], v55 offset:{e*ESTR+512}")
    stamp(6)
    sigpoll()
    stamp(7)
    def dm(p):
        for y in range(2):
            r = 96 + 4 * (2*p + y)
            d = 20 + 4*y
            c = "0" if p == 0 else f"v[{d}:{d+3}]"
            a(f"v_mfma_f32_16x16x32_bf16 v[{d}:{d+3}], v[{r}:{r+3}], v[{160+4*p}:{163+4*p}], {c}")
    a("global_load_dwordx2 v[42:43], v40, s[30:31] sc1\ns_waitcnt lgkmcnt(0)")
    l0, l1 = lab("dp"), lab("dd")
    a(f"s_mov_b32 s66, 0\n{l0}:")
    for p in range(7):
        a(f"buffer_load_dwordx4 v[{160+4*p}:{163+4*p}], v57, s[52:55], s{32 + p} offen sc1")
    a(f"s_add_u32 s66, s66, 1\ns_cmp_gt_u32 s66, {SPIN}\ns_cbranch_scc1 {l1}")
    for p in range(7):
        a(f"s_waitcnt vmcnt({6-p})")
        if p == 0: a("v_max3_u32 v56, v160, v161, v162\nv_max_u32 v56, v56, v163")
        else: a(f"v_max3_u32 v56, v56, v{160+4*p}, v{161+4*p}\nv_max3_u32 v56, v56, v{162+4*p}, v{163+4*p}")
        if dspec: dm(p)
    a(f"v_cmp_eq_u32 vcc, -1, v56\ns_cbranch_vccnz {l0}\n{l1}:\ns_waitcnt vmcnt(0)")
    stamp(8)
    if not dspec:
        for p in range(7): dm(p)
    a("v_cvt_pk_bf16_f32 v42, v42, v43\nv_and_b32 v43, 0xffff0000, v42\nv_lshlrev_b32 v42, 16, v42")
    for r in range(4): a(f"v_cndmask_b32 v{20+r}, v{20+r}, v{24+r}, s[68:69]")
    a(f"ds_write_b128 v59, v[20:23] offset:{RP}")
    a("s_waitcnt lgkmcnt(0)\ns_barrier")
    stamp(9)
    a("s_cmp_lg_u32 s3, 0\ns_cbranch_scc1 L_out")
    for k in range(4): a(f"ds_read2st64_b64 v[{62+4*k}:{65+4*k}], v60 offset0:{RP//512 + 2*k} offset1:{RP//512 + 2*k+1}")
    a("""
    s_waitcnt lgkmcnt(0)
    v_pk_add_f32 v[62:63], v[62:63], v[64:65]
    v_pk_add_f32 v[66:67], v[66:67], v[68:69]
    v_pk_add_f32 v[70:71], v[70:71], v[72:73]
    v_pk_add_f32 v[74:75], v[74:75], v[76:77]
    v_pk_add_f32 v[62:63], v[62:63], v[66:67]
    v_pk_add_f32 v[70:71], v[70:71], v[74:75]
    v_pk_add_f32 v[62:63], v[62:63], v[70:71]
    v_cvt_pk_bf16_f32 v62, v62, v63
    v_and_b32 v63, 0xffff0000, v62
    v_lshlrev_b32 v62, 16, v62
    v_pk_add_f32 v[62:63], v[62:63], v[42:43]
    v_cvt_pk_bf16_f32 v62, v62, v63
    """)
    a(f"global_store_dword v61, v62, s[26:27] {outpol}")
    stamp(10)
    a("L_out:")
    if stamps:
        a("s_waitcnt vmcnt(0)")
        stamp(11)
        a(f"""
        s_getreg_b32 s94, hwreg(HW_REG_XCC_ID)
        s_lshr_b32 s58, s98, 14
        s_or_b32 s94, s94, s58
        s_and_b32 s58, s67, 1
        s_lshl_b32 s58, s58, 9
        s_or_b32 s94, s94, s58
        s_mov_b32 s96, s60
        s_waitcnt lgkmcnt(0)
        s_lshl_b32 s58, s2, 2
        s_add_u32 s58, s58, s3
        s_lshl_b32 s58, s58, 6
        s_add_u32 s58, s58, {STAMP}
        v_mov_b32 v52, s58
        """)
        for i in range(14):
            a(f"v_mov_b32 v53, s{70+2*i}\nglobal_store_dword v52, v53, s[30:31] offset:{4*i}")
    if pin:
        l0 = lab("pin")
        if "dirty" in pin:
            a("s_lshl_b32 s58, s2, 15\ns_add_u32 s58, s58, 0x1000000\nv_add_u32 v52, s58, v2")
            for k in range(8): a("global_store_dwordx4 v52, v[56:59], s[30:31]\nv_add_u32 v52, 4096, v52")
        if "wb" in pin:
            a("s_waitcnt vmcnt(0)\nbuffer_wbl2 sc1\ns_waitcnt vmcnt(0)")
        if "all" not in pin:
            a("""
            s_cmp_lg_u32 s60, 2
            s_cbranch_scc1 L_end
            s_cmp_lg_u32 s61, 0
            s_cbranch_scc1 L_end
            s_cmp_lg_u32 s3, 0
            s_cbranch_scc1 L_end
            """)
        a(f"""
        s_add_u32 s58, s70, 4000
        {l0}:
        s_memrealtime s[66:67]
        s_waitcnt lgkmcnt(0)
        s_sub_u32 s59, s66, s58
        s_cmp_lt_i32 s59, 0
        s_cbranch_scc1 {l0}
        """)
    a("L_end:\ns_endpgm")
    for c in cold:
        a.hist = []
        lines = [t.strip() for t in c.strip().split("\n") if t.strip()]
        a(lines[0]); a("s_nop 7")
        a("\n".join(lines[1:]))
    a.raw("L_pad:\n    s_endpgm\n.fill 1280, 4, 0xbf810000")
    a.raw('.section .rodata,"a"')
    a.raw(".p2align 6")
    a.raw(f".amdhsa_kernel {NAME}_kernel")
    a.raw("  .amdhsa_next_free_vgpr 512\n  .amdhsa_next_free_sgpr 102\n  .amdhsa_accum_offset 256")
    a.raw("  .amdhsa_group_segment_fixed_size 0\n  .amdhsa_kernarg_size 96\n  .amdhsa_user_sgpr_count 2")
    a.raw("  .amdhsa_user_sgpr_kernarg_segment_ptr 1\n  .amdhsa_system_sgpr_workgroup_id_x 1")
    a.raw("  .amdhsa_float_denorm_mode_32 3")
    a.raw(".end_amdhsa_kernel")
    return a.text()

if __name__ == "__main__":
    out = sys.argv[1] if len(sys.argv) > 1 else "cdna_kernels/" + NAME + ".s"
    kw = eval("dict(" + (sys.argv[2] if len(sys.argv) > 2 else "") + ")")
    open(out, "w").write(gen(**kw))
```
